```python
import torch

def _softmax(x, axis=-1):
    return torch.softmax(x, dim=axis)

def _gelu(x):
    return torch.nn.functional.gelu(x, approximate='tanh')

def _silu(x):
    return torch.nn.functional.silu(x)

def _sigmoid(x):
    return torch.sigmoid(x)

def _layernorm(x, axis=-1, eps=1e-05):
    m = x.mean(dim=axis, keepdim=True)
    v = x.var(dim=axis, keepdim=True, unbiased=False)
    return (x - m) / torch.sqrt(v + eps)

def _scatter_add(tgt, idx, src, axis=0):
    return tgt.clone().index_add_(axis, idx, src)

def _segment_sum(src, seg, n):
    out = torch.zeros((n,) + src.shape[1:], dtype=src.dtype)
    return out.index_add_(0, seg, src)

def _pad(x, pw):
    flat = tuple((v for pair in reversed(pw) for v in pair))
    return torch.nn.functional.pad(x, flat)
kernel_name = 'standalone__tensor_product_equiv_equiformer__graph'

def setup_inputs():

    _w = lambda a: (lambda t: t.to(torch.bfloat16) if t.is_floating_point() else t)(torch.as_tensor(a))
    N, deg, C, De = (50000, 16, 64, max(16, 1))
    E = N * deg
    src = (lambda lo, hi, *s: torch.randint(lo, hi, s))(0, N, E).to(torch.int64)
    dst = (lambda lo, hi, *s: torch.randint(lo, hi, s))(0, N, E).to(torch.int64)
    rvec = (lambda *s: torch.randn(*s, dtype=torch.bfloat16) * 0.05)(E, 3).to(float)
    rn = (torch.linalg.norm(rvec, dim=-1, keepdim=True) + 1e-06).to(float)
    rhat = (rvec / rn).to(float)
    eps = torch.zeros((3, 3, 3), dtype=float)
    eps[0, 1, 2] = eps[1, 2, 0] = eps[2, 0, 1] = 1.0
    eps[0, 2, 1] = eps[2, 1, 0] = eps[1, 0, 2] = -1.0
    return {'x': _w((lambda *s: torch.randn(*s, dtype=torch.bfloat16) * 0.2)(N, 4 * C).to(float)), 'rhat': _w(rhat), 'e_attr': _w((lambda *s: torch.randn(*s, dtype=torch.bfloat16) * 0.2)(E, De).to(float)), 'src': _w(src), 'dst': _w(dst), 'w_rad': _w((lambda *s: torch.randn(*s, dtype=torch.bfloat16) * 0.2)(De, 5 * C).to(float)), 'w_si0': _w((lambda *s: torch.randn(*s, dtype=torch.bfloat16) * 0.2)(2 * C, C).to(float)), 'w_si1': _w((lambda *s: torch.randn(*s, dtype=torch.bfloat16) * 0.05)(3 * C, C).to(float)), 'cg_eps': _w(eps)}

def reference(x, rhat, e_attr, src, dst, w_rad, w_si0, w_si1, cg_eps):
    N = x.shape[0]
    C = w_si0.shape[1]
    E = rhat.shape[0]
    x0 = x[:, :C].clone()
    x1 = x[:, C:].reshape(N, 3, C)
    R = (e_attr @ w_rad).reshape(E, 5, C)
    f0 = x0[src]
    f1 = x1[src]
    Y1 = rhat
    p00_0 = f0 * R[:, 0, :]
    p11_0 = torch.einsum('ejc,ej->ec', f1, Y1) * R[:, 1, :]
    p01_1 = torch.einsum('ec,ej->ejc', f0, Y1) * R[:, 2, :][:, None, :]
    p10_1 = f1 * R[:, 3, :][:, None, :]
    p11_1 = torch.einsum('ijk,ekc,ej->eic', cg_eps, f1, Y1) * R[:, 4, :][:, None, :]
    m0 = torch.concatenate([p00_0, p11_0], axis=-1) @ w_si0
    m1 = torch.einsum('ejp,pc->ejc', torch.concatenate([p01_1, p10_1, p11_1], axis=-1), w_si1)
    agg0 = _segment_sum(m0, dst, N)
    agg1 = _segment_sum(m1.reshape(E, 3 * C), dst, N).reshape(N, 3, C)
    gate = _sigmoid(agg0)
    out1 = agg1 * gate[:, None, :]
    return torch.concatenate([agg0, out1.reshape(N, 3 * C)], axis=-1)
```

```python
class Emit:
    def __init__(self):
        self.lines = []
        self.uid = 0

    def __call__(self, s=""):
        for ln in s.split("\n"):
            ln = ln.strip()
            if not ln:
                continue
            if ln.endswith(":") or ln.startswith("."):
                self.lines.append(ln)
            else:
                self.lines.append("    " + ln)

    def c(self, s):
        self.lines.append("    ; " + s)

    def label(self, base):
        self.uid += 1
        return f"L_{base}_{self.uid}"

    def text(self):
        return "\n".join(self.lines) + "\n"


def v(i, n=1):
    return f"v{i}" if n == 1 else f"v[{i}:{i+n-1}]"


def s(i, n=1):
    return f"s{i}" if n == 1 else f"s[{i}:{i+n-1}]"


class Alloc:
    def __init__(self, start, limit):
        self.p = start
        self.limit = limit

    def __call__(self, n=1, align=1):
        self.p = (self.p + align - 1) // align * align
        r = self.p
        self.p += n
        assert self.p <= self.limit, f"register overflow {self.p} > {self.limit}"
        return r


def wave_incl_scan(e, r):
    for sh in (1, 2, 4, 8):
        e("s_nop 1")
        e(f"v_add_u32_dpp {v(r)}, {v(r)}, {v(r)} row_shr:{sh} row_mask:0xf bank_mask:0xf bound_ctrl:0")
    e("s_nop 1")
    e(f"v_add_u32_dpp {v(r)}, {v(r)}, {v(r)} row_bcast:15 row_mask:0xa bank_mask:0xf")
    e("s_nop 1")
    e(f"v_add_u32_dpp {v(r)}, {v(r)}, {v(r)} row_bcast:31 row_mask:0xc bank_mask:0xf")


def srd(e, d, base, nbytes, add=0):
    if add:
        e(f"s_add_u32 {s(d)}, {s(base)}, {hex(add)}")
        e(f"s_addc_u32 {s(d+1)}, {s(base+1)}, 0")
    else:
        e(f"s_mov_b32 {s(d)}, {s(base)}")
        e(f"s_mov_b32 {s(d+1)}, {s(base+1)}")
    e(f"s_mov_b32 {s(d+2)}, {hex(nbytes)}")
    e(f"s_mov_b32 {s(d+3)}, 0x00020000")
```

```python
N = 50000
E = 800000
NPB = 98
NBK = 512
NCH = 250
CH = 3200
DIVM = 85599

WS_BYTES = 268435456
WRAD_OFF = 0
WSI_OFF = 16384
TAB_OFF = 65536
REC_OFF = 1 << 20
APAY_OFF = 16 << 20
PART_OFF = 64 << 20
PROF_OFF = 12 << 20

X_BYTES = N * 512
A_BYTES = E * 32
NAME = "standalone__tensor_product_equiv_equiformer__graph"
KA = "part_kernel"
KB = NAME + "_kernel"


def descriptor(name, vgpr, sgpr, accum):
    return f""".amdhsa_kernel {name}
  .amdhsa_next_free_vgpr {vgpr}
  .amdhsa_next_free_sgpr {sgpr}
  .amdhsa_accum_offset {accum}
  .amdhsa_group_segment_fixed_size 0
  .amdhsa_kernarg_size 96
  .amdhsa_user_sgpr_count 2
  .amdhsa_user_sgpr_kernarg_segment_ptr 1
  .amdhsa_system_sgpr_workgroup_id_x 1
  .amdhsa_float_denorm_mode_32 3
.end_amdhsa_kernel
"""
```

```python
from asmlib import *
from common import *

A_THREADS = 832
L_CNT = 0
L_STAGE = 2048
L_ASTAGE = L_STAGE + CH * 12


def lds_bytes(opt):
    return L_ASTAGE + (CH * 32 if opt.payload else 0)


def gen(e, opt):
    nt_in = " nt" if opt.a_nt_in else ""
    nt_out = " nt" if opt.a_nt_out else ""
    S_DST, S_SRC, S_RH, S_EA, S_WS = 4, 8, 12, 16, 20
    P = 24
    s_valid, s_w, s_t, s_t2, s_sel = 40, 42, 43, 44, 45
    e(f".p2align 8\n.type {KA},@function\n{KA}:")
    e(f"s_cmp_ge_u32 s2, {NCH + 5}")
    e("s_cbranch_scc1 LA_end")
    e(f"s_load_dwordx4 {s(P,4)}, s[0:1], 8")
    e(f"s_load_dwordx4 {s(P+4,4)}, s[0:1], 24")
    e(f"s_load_dwordx4 {s(P+8,4)}, s[0:1], 40")
    e(f"s_load_dwordx2 {s(P+12,2)}, s[0:1], 56")
    e(f"s_load_dwordx2 {s(P+14,2)}, s[0:1], 88")
    e("v_lshrrev_b32 v1, 6, v0")
    e("v_and_b32 v2, 63, v0")
    e(f"v_readfirstlane_b32 {s(s_w)}, v1")
    e("s_waitcnt lgkmcnt(0)")
    srd(e, S_WS, P + 14, WS_BYTES)
    e(f"s_cmp_ge_u32 s2, {NCH}")
    e("s_cbranch_scc1 LA_weights")
    srd(e, S_DST, P + 6, E * 4)
    srd(e, S_SRC, P + 4, E * 4)
    srd(e, S_RH, P + 0, E * 6)
    srd(e, S_EA, P + 2, A_BYTES)

    vD, vS, vR, vB, vK, vW2, vT, vZ = 4, 8, 12, 20, 24, 28, 32, 40
    e.c("edge loads: thread handles edges chunk*3200 + 4*tid .. +3")
    e("s_movk_i32 s46, 800")
    e(f"v_cmp_gt_u32 {s(s_valid,2)}, s46, v0")
    e(f"s_mul_i32 {s(s_t)}, s2, {CH * 4}")
    e(f"s_mul_i32 {s(s_t2)}, s2, {CH * 6}")
    e(f"v_lshl_add_u32 v3, v0, 4, {s(s_t)}")
    e("v_mul_u32_u24 v18, 24, v0")
    e(f"v_add_u32 v18, {s(s_t2)}, v18")
    e(f"s_mov_b64 exec, {s(s_valid,2)}")
    e(f"buffer_load_dwordx4 {v(vD,4)}, v3, {s(S_DST,4)}, 0 offen{nt_in}")
    e(f"buffer_load_dwordx4 {v(vS,4)}, v3, {s(S_SRC,4)}, 0 offen{nt_in}")
    e(f"buffer_load_dwordx4 {v(vR,4)}, v18, {s(S_RH,4)}, 0 offen{nt_in}")
    e(f"buffer_load_dwordx2 {v(vR+4,2)}, v18, {s(S_RH,4)}, 0 offen offset:16{nt_in}")
    e("s_mov_b64 exec, -1")
    ndma = 0
    if opt.payload:
        ndma = 8
        e.c("stage this chunk's e_attr rows in LDS (100 pieces of 1 KiB)")
        e(f"s_mul_i32 {s(s_t)}, s2, {CH * 32}")
        e(f"v_lshl_add_u32 v19, v2, 4, {s(s_t)}")
        for i in range(8):
            e(f"s_add_u32 {s(s_t2)}, {s(s_w)}, {13 * i}")
            e(f"s_min_u32 {s(s_t2)}, {s(s_t2)}, 99")
            e(f"s_lshl_b32 {s(s_t2)}, {s(s_t2)}, 10")
            e(f"s_add_u32 m0, {s(s_t2)}, {L_ASTAGE}")
            e(f"v_add_u32 v41, {s(s_t2)}, v19")
            e(f"buffer_load_dwordx4 v41, {s(S_EA,4)}, 0 offen{nt_in} lds")
    e.c("zero the bucket counters")
    e(f"v_mov_b32 {v(vZ)}, 0")
    e("v_lshlrev_b32 v1, 2, v0")
    e(f"s_cmp_ge_u32 {s(s_w)}, 8")
    e("s_cbranch_scc1 LA_nz")
    e(f"ds_write_b32 v1, {v(vZ)} offset:{L_CNT}")
    e("LA_nz:")
    e(f"s_mov_b32 {s(s_t)}, {DIVM}")
    e(f"s_mul_i32 {s(s_t2)}, s2, {CH}")
    e(f"v_lshl_add_u32 v3, v0, 2, {s(s_t2)}")
    e(f"v_mov_b32 {v(vZ)}, 1")
    e("s_waitcnt lgkmcnt(0)")
    e("s_barrier")
    e(f"s_mov_b64 exec, {s(s_valid,2)}")
    e(f"s_waitcnt vmcnt({3 + ndma})")
    for k in range(4):
        e(f"v_mul_u32_u24 {v(vB+k)}, {s(s_t)}, {v(vD+k)}")
        e(f"v_lshrrev_b32 {v(vB+k)}, 23, {v(vB+k)}")
        e(f"v_mul_u32_u24 {v(vT)}, {NPB}, {v(vB+k)}")
        e(f"v_lshlrev_b32 {v(vB+k)}, 2, {v(vB+k)}")
        e(f"ds_add_rtn_u32 {v(vK+k)}, {v(vB+k)}, {v(vZ)} offset:{L_CNT}")
        e(f"v_sub_u32 {v(vT)}, {v(vD+k)}, {v(vT)}")
        e(f"v_add_u32 {v(vW2+k)}, {k}, v3")
        e(f"v_lshl_or_b32 {v(vW2+k)}, {v(vT)}, 20, {v(vW2+k)}")
    e("s_mov_b64 exec, -1")
    e("s_waitcnt lgkmcnt(0)")
    e("s_barrier")
    e.c("wave 0: exclusive scan of the 512 counters, table row to global")
    e(f"s_cmp_lg_u32 {s(s_w)}, 0")
    e("s_cbranch_scc1 LA_noscan")
    vC, vP = 44, 52
    e("v_lshlrev_b32 v1, 5, v0")
    e(f"ds_read_b128 {v(vC,4)}, v1 offset:{L_CNT}")
    e(f"ds_read_b128 {v(vC+4,4)}, v1 offset:{L_CNT + 16}")
    e(f"s_lshl_b32 {s(s_t2)}, s2, 11")
    e(f"s_add_u32 {s(s_t2)}, {s(s_t2)}, {TAB_OFF}")
    e(f"v_add_u32 v42, {s(s_t2)}, v1")
    e("s_waitcnt lgkmcnt(0)")
    e(f"v_add3_u32 v43, {v(vC)}, {v(vC+1)}, {v(vC+2)}")
    e(f"v_add3_u32 v43, v43, {v(vC+3)}, {v(vC+4)}")
    e(f"v_add3_u32 v43, v43, {v(vC+5)}, {v(vC+6)}")
    e(f"v_add_u32 v43, v43, {v(vC+7)}")
    e(f"v_mov_b32 {v(vP)}, v43")
    wave_incl_scan(e, vP)
    e(f"v_sub_u32 {v(vP)}, {v(vP)}, v43")
    for k in range(1, 8):
        e(f"v_add_u32 {v(vP+k)}, {v(vP+k-1)}, {v(vC+k-1)}")
    e(f"ds_write_b128 v1, {v(vP,4)} offset:{L_CNT}")
    e(f"ds_write_b128 v1, {v(vP+4,4)} offset:{L_CNT + 16}")
    for k in range(8):
        e(f"v_lshl_or_b32 {v(vC+k)}, {v(vC+k)}, 16, {v(vP+k)}")
    e(f"buffer_store_dwordx4 {v(vC,4)}, v42, {s(S_WS,4)}, 0 offen")
    e(f"buffer_store_dwordx4 {v(vC+4,4)}, v42, {s(S_WS,4)}, 0 offen offset:16")
    e("s_waitcnt lgkmcnt(0)")
    e("LA_noscan:")
    e("s_barrier")
    e(f"s_mov_b64 exec, {s(s_valid,2)}")
    for k in range(4):
        e(f"ds_read_b32 {v(vT+k)}, {v(vB+k)} offset:{L_CNT}")
    e.c("pack the record words while the start offsets arrive")
    e(f"s_mov_b32 {s(s_sel)}, 0x05040100")
    e("s_waitcnt vmcnt(0)" if not opt.payload else f"s_waitcnt vmcnt({ndma})")
    if opt.payload:
        e.c("wave 0 has two younger stores in flight, so its count above is stricter than needed, never weaker")
    vA0, vA1 = 44, 48
    e(f"v_mov_b32 {v(vA0)}, {v(vR)}")
    e(f"v_perm_b32 {v(vA1)}, {v(vS)}, {v(vR+1)}, {s(s_sel)}")
    e(f"v_alignbit_b32 {v(vA0+1)}, {v(vR+2)}, {v(vR+1)}, 16")
    e(f"v_alignbit_b32 {v(vA1+1)}, {v(vS+1)}, {v(vR+2)}, 16")
    e(f"v_mov_b32 {v(vA0+2)}, {v(vR+3)}")
    e(f"v_perm_b32 {v(vA1+2)}, {v(vS+2)}, {v(vR+4)}, {s(s_sel)}")
    e(f"v_alignbit_b32 {v(vA0+3)}, {v(vR+5)}, {v(vR+4)}, 16")
    e(f"v_alignbit_b32 {v(vA1+3)}, {v(vS+3)}, {v(vR+5)}, 16")
    e("s_waitcnt lgkmcnt(0)")
    for k in range(4):
        e(f"v_add_u32 {v(vT+k)}, {v(vT+k)}, {v(vK+k)}")
        e(f"v_mul_u32_u24 {v(vT+k)}, 12, {v(vT+k)}")
        e(f"v_add_u32 {v(vT+k)}, {L_STAGE}, {v(vT+k)}")
        e(f"ds_write2_b32 {v(vT+k)}, {v(vA0+k)}, {v(vA1+k)} offset0:0 offset1:1")
        e(f"ds_write_b32 {v(vT+k)}, {v(vW2+k)} offset:8")
    e("s_mov_b64 exec, -1")
    e("s_waitcnt vmcnt(0) lgkmcnt(0)")
    e("s_barrier")
    e.c("coalesced write-out of the sorted records")
    e(f"s_mov_b64 exec, {s(s_valid,2)}")
    e("v_lshlrev_b32 v1, 4, v0")
    for k in range(3):
        e(f"ds_read_b128 {v(4+4*k,4)}, v1 offset:{L_STAGE + k * 12800}")
    e(f"s_mul_i32 {s(s_t)}, s2, {CH * 12}")
    e(f"s_add_u32 {s(s_t)}, {s(s_t)}, {REC_OFF}")
    e(f"v_add_u32 v3, {s(s_t)}, v1")
    if opt.payload:
        e("v_lshrrev_b32 v16, 1, v0")
        e("v_mul_u32_u24 v16, 12, v16")
        for k in range(8):
            e(f"ds_read_b32 {v(20+k)}, v16 offset:{L_STAGE + 8 + k * 4800}")
    for k in range(3):
        e(f"s_waitcnt lgkmcnt({(8 if opt.payload else 0) + 2 - k})")
        e(f"buffer_store_dwordx4 {v(4+4*k,4)}, v3, {s(S_WS,4)}, 0 offen{nt_out}")
        if k < 2:
            e("v_add_u32 v3, 12800, v3")
    if opt.payload:
        e(f"s_mul_i32 {s(s_t)}, s2, {CH * 32}")
        e(f"s_sub_u32 {s(s_t2)}, {L_ASTAGE}, {s(s_t)}")
        e("v_and_b32 v17, 1, v0")
        e(f"v_lshl_add_u32 v17, v17, 4, {s(s_t2)}")
        e(f"s_add_u32 {s(s_t)}, {s(s_t)}, {APAY_OFF}")
        e(f"v_add_u32 v3, {s(s_t)}, v1")
        e("s_waitcnt lgkmcnt(0)")
        for k in range(8):
            e(f"v_and_b32 {v(20+k)}, 0xfffff, {v(20+k)}")
            e(f"v_lshl_add_u32 {v(20+k)}, {v(20+k)}, 5, v17")
            e(f"ds_read_b128 {v(28+4*k,4)}, {v(20+k)}")
        for k in range(8):
            e(f"s_waitcnt lgkmcnt({7-k})")
            e(f"buffer_store_dwordx4 {v(28+4*k,4)}, v3, {s(S_WS,4)}, 0 offen{nt_out}")
            if k < 7:
                e("v_add_u32 v3, 12800, v3")
    e("s_endpgm")

    e("LA_weights:")
    e.c("workgroups 250..254: MFMA operand fragments of the weights, one fragment per wave")
    e(f"s_cmp_ge_u32 {s(s_w)}, 10")
    e("s_cbranch_scc1 LA_end")
    e("v_and_b32 v3, 31, v2")
    e("v_lshrrev_b32 v4, 5, v2")
    e(f"s_cmp_gt_u32 s2, {NCH}")
    e("s_cbranch_scc1 LA_wsi")
    srd(e, S_DST, P + 8, 16 * 640)
    e("v_bfe_u32 v5, v3, 2, 1")
    e("v_lshlrev_b32 v5, 4, v5")
    e("v_lshrrev_b32 v6, 3, v3")
    e("v_lshl_add_u32 v5, v6, 2, v5")
    e("v_and_b32 v6, 3, v3")
    e("v_add_u32 v5, v5, v6")
    e(f"s_lshl_b32 {s(s_t)}, {s(s_w)}, 5")
    e(f"v_add_u32 v5, {s(s_t)}, v5")
    e("v_lshlrev_b32 v5, 1, v5")
    e("v_mul_u32_u24 v6, 5120, v4")
    e("v_add_u32 v5, v5, v6")
    e("v_add_u32 v7, 2560, v5")
    for j in range(8):
        e(f"buffer_load_ushort {v(8+j)}, {'v5' if j < 4 else 'v7'}, {s(S_DST,4)}, 0 offen offset:{(j % 4) * 640}")
    e(f"s_lshl_b32 {s(s_t)}, {s(s_w)}, 10")
    e(f"s_add_u32 {s(s_t)}, {s(s_t)}, {WRAD_OFF}")
    e("s_branch LA_wstore")
    e("LA_wsi:")
    e(f"s_sub_u32 {s(s_t)}, s2, {NCH + 1}")
    e(f"s_mul_i32 {s(s_t)}, {s(s_t)}, 10")
    e(f"s_add_u32 {s(s_t)}, {s(s_t)}, {s(s_w)}")
    e(f"s_cmp_ge_u32 {s(s_t)}, 20")
    e("s_cselect_b32 s47, 1, 0")
    e("s_mul_i32 s48, s47, 20")
    e(f"s_sub_u32 s48, {s(s_t)}, s48")
    e("s_lshr_b32 s49, s48, 2")
    e("s_cmp_ge_u32 s49, 2")
    e(f"s_cselect_b32 {s(S_DST)}, {s(P+12)}, {s(P+10)}")
    e(f"s_cselect_b32 {s(S_DST+1)}, {s(P+13)}, {s(P+11)}")
    e("s_cselect_b32 s50, 3, 2")
    e("s_cselect_b32 s51, 2, 0")
    e(f"s_lshl_b32 {s(S_DST+2)}, s50, 13")
    e(f"s_mov_b32 {s(S_DST+3)}, 0x00020000")
    e("s_sub_u32 s49, s49, s51")
    e("s_lshl_b32 s49, s49, 6")
    e("s_lshl_b32 s50, s47, 5")
    e("s_add_u32 s49, s49, s50")
    e("s_and_b32 s50, s48, 2")
    e("s_lshl_b32 s50, s50, 2")
    e("s_add_u32 s49, s49, s50")
    e("s_lshl_b32 s49, s49, 7")
    e("s_and_b32 s50, s48, 1")
    e("s_lshl_b32 s50, s50, 1")
    e("s_add_u32 s49, s49, s50")
    e("v_lshlrev_b32 v5, 2, v3")
    e("v_lshl_add_u32 v5, v4, 11, v5")
    e("v_add_u32 v5, s49, v5")
    for j in range(8):
        e(f"buffer_load_ushort {v(8+j)}, v5, {s(S_DST,4)}, 0 offen offset:{j * 128}")
    e(f"s_lshl_b32 {s(s_t)}, {s(s_t)}, 10")
    e(f"s_add_u32 {s(s_t)}, {s(s_t)}, {WSI_OFF}")
    e("LA_wstore:")
    e(f"v_lshl_add_u32 v6, v2, 4, {s(s_t)}")
    e("s_waitcnt vmcnt(0)")
    for j in range(4):
        e(f"v_lshl_or_b32 {v(16+j)}, {v(9+2*j)}, 16, {v(8+2*j)}")
    e(f"buffer_store_dwordx4 v[16:19], v6, {s(S_WS,4)}, 0 offen")
    e("LA_end:")
    e("s_endpgm")
    return dict(vgpr=64, sgpr=56)
```

```python
from asmlib import *
from common import *

B_THREADS = 512
SC = 62
JMAX = 1792
NSPLIT = 128 - NPB
RING_W = 3 * 2048
L_A = 0
L_RING = SC * 1024
L_META0 = L_RING + 8 * RING_W
MS = SC * 384
L_INV = L_META0 + 2 * MS
L_SLOTN = L_INV + 256
L_END = L_SLOTN + 1024
assert L_META0 + MS >= 131072 and L_END <= 163840
T_CNT, T_H1, T_H2, T_TL, T_SORT, T_INFO, TB = 0, 512, 768, 1024, 1088, 1664, 2304
L_WSUM = 2 * TB
L_POS = L_RING
PAT = 0xC4000000
SPLITMARK = 0x7F000000


def lds_bytes(opt):
    return L_END


def gen(e, opt):
    sa = Alloc(3, 102)
    s_t0 = sa()
    S_X, S_A, S_WS, S_OUT, S_PART = (sa(4, 4) for _ in range(5))
    P = sa(8, 4)
    s_m = sa(14, 2)
    s_ex = sa(2, 2)
    s_w, s_chi, s_tile, s_rp = sa(), sa(), sa(), sa()
    s_bk0, s_mybk = sa(), sa()
    s_tot, s_r0, s_J, s_cap, s_act, s_first = (sa(2, 2) for _ in range(6))
    s_TL = sa(8, 4)
    s_myJ, s_myr0, s_tb = sa(), sa(), sa()
    s_rho, s_sum, s_mbeg, s_mend, s_abeg = sa(), sa(), sa(), sa(), sa()
    s_pm, s_pinc, s_pleft, s_psoff = sa(), sa(), sa(), sa()
    s_yoff, s_aoff, s_r, s_rbeg, s_rend = sa(), sa(), sa(), sa(), sa()
    s_isfirst, s_islast, s_msk, s_t1, s_t2, s_t3 = (sa() for _ in range(6))

    va = Alloc(1, 256)
    vLane = va()
    PS = va(32, 2)
    PV = va(56, 2)
    F = va(32, 2)
    POOL = va(96, 2)
    R = POOL
    FX = POOL + 48
    XR = POOL + 64
    AF = POOL + 72
    W = POOL + 76
    YR = va(2, 2)
    YF = va(6, 2)
    SRC = va(2, 2)
    VO = va(2, 2)
    cA, cY, cS, cX0, cX1, cD0, cD1 = (va() for _ in range(7))
    aA, aY, aS, aX0, aX1 = (va() for _ in range(5))
    vT = va(6, 2)

    U = [PV + 8 * i for i in range(7)] + [F + 8 * i for i in range(4)]
    blk = {"S1": (U[0], U[10]), "S2": (U[1], U[2]), "S3": (U[2], U[9]), "D": (U[3], U[7]),
           "C1": (U[4], U[10]), "C2": (U[5], U[8]), "C3": (U[6], U[9]),
           "P0": (PS, U[7]), "Q1": (PS + 8, U[8]), "Q2": (PS + 16, U[9]), "Q3": (PS + 24, U[10])}

    def pair(name, i):
        return blk[name][i // 4] + 2 * (i % 4)

    e(f".p2align 8\n.type {KB},@function\n{KB}:")
    e("s_cmp_ge_u32 s2, 256")
    e("s_cbranch_scc1 LB_end")
    e(f"s_load_dwordx2 {s(P,2)}, s[0:1], 0")
    e(f"s_load_dwordx2 {s(P+2,2)}, s[0:1], 16")
    e(f"s_load_dwordx2 {s(P+4,2)}, s[0:1], 72")
    e(f"s_load_dwordx2 {s(P+6,2)}, s[0:1], 88")
    e(f"v_lshrrev_b32 {v(vT)}, 6, v0")
    e(f"v_and_b32 {v(vLane)}, 63, v0")
    e(f"v_readfirstlane_b32 {s(s_w)}, {v(vT)}")
    e(f"s_and_b32 {s(s_t0)}, s2, 7")
    e(f"s_lshl_b32 {s(s_t0)}, {s(s_t0)}, 5")
    e(f"s_lshr_b32 {s(s_bk0)}, s2, 3")
    e(f"s_add_u32 {s(s_bk0)}, {s(s_bk0)}, {s(s_t0)}")
    e(f"s_and_b32 {s(s_chi)}, {s(s_w)}, 1")
    e(f"s_lshr_b32 {s(s_rp)}, {s(s_w)}, 2")
    e(f"s_lshr_b32 {s(s_tile)}, {s(s_w)}, 1")
    e(f"s_xor_b32 {s(s_tile)}, {s(s_tile)}, {s(s_rp)}")
    e(f"s_lshl_b32 {s(s_mybk)}, {s(s_rp)}, 8")
    e(f"s_add_u32 {s(s_mybk)}, {s(s_mybk)}, {s(s_bk0)}")
    e(f"s_mul_i32 {s(s_tb)}, {s(s_rp)}, {TB}")
    e(f"s_mov_b64 {s(s_r0,2)}, 0")
    e(f"s_movk_i32 {s(s_cap)}, {JMAX}")
    e(f"s_movk_i32 {s(s_cap+1)}, {JMAX}")
    for r in (s_act, s_act + 1, s_first, s_first + 1):
        e(f"s_mov_b32 {s(r)}, 1")
    e(f"s_mov_b32 {s(s_msk)}, 0xffff0000")
    e(f"s_mul_i32 {s(s_rbeg)}, {s(s_w)}, {RING_W}")
    e(f"s_add_u32 {s(s_rbeg)}, {s(s_rbeg)}, {L_RING}")
    e(f"s_add_u32 {s(s_rend)}, {s(s_rbeg)}, {RING_W}")
    e("s_waitcnt lgkmcnt(0)")
    srd(e, S_X, P, X_BYTES)
    if opt.payload:
        srd(e, S_A, P + 6, A_BYTES, APAY_OFF)
    else:
        srd(e, S_A, P + 2, A_BYTES)
    srd(e, S_WS, P + 6, WS_BYTES)
    srd(e, S_OUT, P + 4, X_BYTES)
    srd(e, S_PART, P + 6, N * 1024, PART_OFF)

    e.c("per-lane constants; consumer lane (e, h) serves slot e ^ (16*chi)")
    t0, t1, t2 = vT, vT + 1, vT + 2
    e(f"s_lshl_b32 {s(s_t0)}, {s(s_chi)}, 4")
    e(f"v_and_b32 {v(t0)}, 31, {v(vLane)}")
    e(f"v_xor_b32 {v(t0)}, {s(s_t0)}, {v(t0)}")
    e(f"v_lshrrev_b32 {v(t1)}, 5, {v(vLane)}")
    e(f"v_lshlrev_b32 {v(cY)}, 3, {v(t0)}")
    e(f"v_bfe_u32 {v(t2)}, {v(t0)}, 3, 1")
    e(f"v_xor_b32 {v(cA)}, {v(t2)}, {v(t1)}")
    e(f"v_lshlrev_b32 {v(cA)}, 4, {v(cA)}")
    e(f"v_lshl_add_u32 {v(cA)}, {v(t0)}, 5, {v(cA)}")
    e(f"v_xor_b32 {v(t2)}, {v(t2)}, {v(t1)}")
    e(f"v_lshlrev_b32 {v(t2)}, 1, {v(t2)}")
    e(f"v_and_b32 {v(cX1)}, 1, {v(t0)}")
    e(f"v_or_b32 {v(t2)}, {v(t2)}, {v(cX1)}")
    e(f"v_lshlrev_b32 {v(t2)}, 4, {v(t2)}")
    e(f"v_lshl_add_u32 {v(t2)}, {v(cX1)}, 10, {v(t2)}")
    e(f"v_lshrrev_b32 {v(cX0)}, 1, {v(t0)}")
    e(f"v_lshl_add_u32 {v(cX0)}, {v(cX0)}, 6, {v(t2)}")
    e(f"v_xor_b32 {v(cX1)}, 16, {v(cX0)}")
    e(f"v_lshrrev_b32 {v(t0)}, 2, {v(vLane)}")
    e(f"v_lshlrev_b32 {v(cS)}, 4, {v(t0)}")
    e(f"v_bfe_u32 {v(t0)}, {v(vLane)}, 4, 1")
    e(f"v_lshlrev_b32 {v(t0)}, 1, {v(t0)}")
    e(f"v_and_b32 {v(t1)}, 3, {v(vLane)}")
    e(f"v_xor_b32 {v(t0)}, {v(t0)}, {v(t1)}")
    e(f"v_lshlrev_b32 {v(cD0)}, 4, {v(t0)}")
    e(f"v_xor_b32 {v(cD1)}, 16, {v(cD0)}")

    pa = Alloc(PS, PS + 120)
    vRec = pa(28, 2)
    vPos = pa(7)
    vRank = pa(7)
    vU, vEnt, vCnt, vScan, vG, vOne = (pa() for _ in range(6))
    vPat = pa(4, 2)
    q = [pa() for _ in range(12)]
    q4 = pa(8, 2)

    e("LB_job:")
    e(f"v_and_b32 {v(vU)}, 255, v0")
    e(f"s_lshl_b32 {s(s_t0)}, {s(s_mybk)}, 2")
    e(f"s_add_u32 {s(s_t0)}, {s(s_t0)}, {TAB_OFF}")
    e(f"v_lshl_add_u32 {v(q[0])}, {v(vU)}, 11, {s(s_t0)}")
    e(f"v_mov_b32 {v(vEnt)}, 0")
    e(f"v_cmp_gt_u32 vcc, {NCH}, {v(vU)}")
    e("s_mov_b64 exec, vcc")
    e(f"buffer_load_dword {v(vEnt)}, {v(q[0])}, {s(S_WS,4)}, 0 offen")
    e("s_mov_b64 exec, -1")
    e.c("fill the step rows with the empty-slot pattern, clear the counters")
    for k in range(4):
        e(f"v_mov_b32 {v(vPat+k)}, {hex(PAT)}")
    e(f"v_lshlrev_b32 {v(q[0])}, 4, v0")
    e(f"v_add_u32 {v(q[0])}, {L_META0}, {v(q[0])}")
    n16 = (2 * MS + 256) // 16
    for k in range((n16 + 511) // 512):
        rem = n16 - 512 * k
        if rem < 512:
            e(f"v_cmp_gt_u32 vcc, {rem}, v0")
            e("s_mov_b64 exec, vcc")
        e(f"ds_write_b128 {v(q[0])}, {v(vPat,4)} offset:{k * 8192}")
    e("s_mov_b64 exec, -1")
    for k in range(4):
        e(f"v_mov_b32 {v(q4+k)}, 0")
    e(f"v_lshl_add_u32 {v(q[0])}, {v(vU)}, 4, {s(s_tb)}")
    e(f"v_cmp_gt_u32 vcc, 65, {v(vU)}")
    e("s_mov_b64 exec, vcc")
    e(f"ds_write_b128 {v(q[0])}, {v(q4,4)}")
    e("s_mov_b64 exec, -1")
    e(f"v_mov_b32 {v(vOne)}, 1")
    e(f"v_mul_u32_u24 {v(vG)}, {CH}, {v(vU)}")
    e("s_waitcnt vmcnt(0)")
    e(f"v_lshrrev_b32 {v(vCnt)}, 16, {v(vEnt)}")
    e(f"v_and_b32 {v(vEnt)}, 0xffff, {v(vEnt)}")
    e(f"v_add_u32 {v(vG)}, {v(vG)}, {v(vEnt)}")
    e(f"v_mov_b32 {v(vScan)}, {v(vCnt)}")
    wave_incl_scan(e, vScan)
    e(f"s_lshl_b32 {s(s_t0)}, {s(s_w)}, 2")
    e(f"v_mov_b32 {v(q[0])}, {s(s_t0)}")
    e(f"v_cmp_eq_u32 vcc, 63, {v(vLane)}")
    e("s_mov_b64 exec, vcc")
    e(f"ds_write_b32 {v(q[0])}, {v(vScan)} offset:{L_WSUM}")
    e("s_mov_b64 exec, -1")
    e(f"v_sub_u32 {v(vScan)}, {v(vScan)}, {v(vCnt)}")
    e(f"v_mov_b32 {v(q[0])}, 0")
    e("s_waitcnt lgkmcnt(0)")
    e("s_barrier")
    e(f"ds_read_b128 {v(q4,4)}, {v(q[0])} offset:{L_WSUM}")
    e(f"ds_read_b128 {v(q4+4,4)}, {v(q[0])} offset:{L_WSUM + 16}")
    e("s_waitcnt lgkmcnt(0)")
    for k in range(8):
        e(f"v_readfirstlane_b32 {s(s_TL+k)}, {v(q4+k)}")
    e("s_nop 0")
    for h in range(2):
        for k in range(1, 4):
            e(f"s_add_u32 {s(s_TL+4*h+k)}, {s(s_TL+4*h+k)}, {s(s_TL+4*h+k-1)}")
        e(f"s_mov_b32 {s(s_tot+h)}, {s(s_TL+4*h+3)}")
        e(f"s_sub_u32 {s(s_J+h)}, {s(s_tot+h)}, {s(s_r0+h)}")
        e(f"s_min_u32 {s(s_J+h)}, {s(s_J+h)}, {s(s_cap+h)}")
    e(f"s_mov_b32 {s(s_t0)}, 0")
    for w in (1, 2, 3, 5, 6, 7):
        e(f"s_cmp_eq_u32 {s(s_w)}, {w}")
        e(f"s_cselect_b32 {s(s_t0)}, {s(s_TL+w-1)}, {s(s_t0)}")
    e(f"s_cmp_eq_u32 {s(s_rp)}, 0")
    e(f"s_cselect_b32 {s(s_myJ)}, {s(s_J)}, {s(s_J+1)}")
    e(f"s_cselect_b32 {s(s_myr0)}, {s(s_r0)}, {s(s_r0+1)}")
    e(f"s_sub_u32 {s(s_t0)}, {s(s_t0)}, {s(s_myr0)}")
    e(f"v_add_u32 {v(vScan)}, {s(s_t0)}, {v(vScan)}")
    e.c("list the global positions of the job's records")
    e(f"v_sub_u32 {v(q[0])}, 0, {v(vScan)}")
    e(f"v_max_i32 {v(q[0])}, 0, {v(q[0])}")
    e(f"v_sub_u32 {v(q[1])}, {s(s_myJ)}, {v(vScan)}")
    e(f"v_min_i32 {v(q[1])}, {v(q[1])}, {v(vCnt)}")
    e(f"v_sub_u32 {v(q[1])}, {v(q[1])}, {v(q[0])}")
    e(f"v_add_u32 {v(vG)}, {v(vG)}, {v(q[0])}")
    e(f"v_add_u32 {v(q[0])}, {v(q[0])}, {v(vScan)}")
    e(f"s_mul_i32 {s(s_t1)}, {s(s_rp)}, {JMAX * 4}")
    e(f"s_add_u32 {s(s_t1)}, {s(s_t1)}, {L_POS}")
    e(f"v_lshl_add_u32 {v(q[0])}, {v(q[0])}, 2, {s(s_t1)}")
    e("LB_pl:")
    e(f"v_cmp_lt_i32 vcc, 0, {v(q[1])}")
    e("s_and_b64 exec, exec, vcc")
    e("s_cbranch_execz LB_pl_done")
    e(f"ds_write_b32 {v(q[0])}, {v(vG)}")
    e(f"v_add_u32 {v(q[0])}, 4, {v(q[0])}")
    e(f"v_add_u32 {v(vG)}, 1, {v(vG)}")
    e(f"v_subrev_u32 {v(q[1])}, 1, {v(q[1])}")
    e("s_branch LB_pl")
    e("LB_pl_done:")
    e("s_mov_b64 exec, -1")
    e(f"v_lshl_add_u32 {v(q[0])}, {v(vU)}, 2, {s(s_t1)}")
    for k in range(7):
        e(f"v_add_u32 {v(q[1])}, {256 * k}, {v(vU)}")
        e(f"v_cmp_gt_u32 {s(s_m+2*k,2)}, {s(s_myJ)}, {v(q[1])}")
    e(f"v_mov_b32 {v(q[2])}, 0xffffff00")
    e(f"s_mov_b32 {s(s_t0)}, {REC_OFF}")
    e("s_waitcnt lgkmcnt(0)")
    e("s_barrier")
    for k in range(7):
        e(f"ds_read_b32 {v(vPos+k)}, {v(q[0])} offset:{1024 * k}")
    for k in range(7):
        e(f"s_waitcnt lgkmcnt({6-k})")
        e(f"v_mad_u32_u24 {v(q[3+k])}, {v(vPos+k)}, 12, {s(s_t0)}")
        e(f"v_cndmask_b32 {v(q[3+k])}, {v(q[2])}, {v(q[3+k])}, {s(s_m+2*k,2)}")
        e(f"buffer_load_dwordx3 {v(vRec+4*k,3)}, {v(q[3+k])}, {s(S_WS,4)}, 0 offen")
    e.c("rank of every record inside its node")
    for k in range(7):
        e(f"s_waitcnt vmcnt({6-k})")
        e(f"v_lshrrev_b32 {v(vRec+4*k+3)}, 20, {v(vRec+4*k+2)}")
        e(f"v_lshl_add_u32 {v(vRec+4*k+3)}, {v(vRec+4*k+3)}, 2, {s(s_tb)}")
        e(f"s_mov_b64 exec, {s(s_m+2*k,2)}")
        e(f"ds_add_rtn_u32 {v(vRank+k)}, {v(vRec+4*k+3)}, {v(vOne)} offset:{T_CNT}")
        e("s_mov_b64 exec, -1")
    e("s_waitcnt lgkmcnt(0)")
    e("s_barrier")

    e.c("waves 0 and 4: order the nodes by degree, split the largest, lay out the tiles")
    e(f"s_and_b32 {s(s_t0)}, {s(s_w)}, 3")
    e(f"s_cmp_lg_u32 {s(s_t0)}, 0")
    e("s_cbranch_scc1 LB_nosort")
    d0, d1, k0, k1, o0, o1, ad, hv, hs, ln, jj, sp = q
    e(f"v_lshl_add_u32 {v(ad)}, {v(vLane)}, 2, {s(s_tb)}")
    e(f"ds_read_b32 {v(d0)}, {v(ad)} offset:{T_CNT}")
    e(f"ds_read_b32 {v(d1)}, {v(ad)} offset:{T_CNT + 256}")
    e(f"v_cmp_gt_u32 {s(s_ex,2)}, {NPB - 64}, {v(vLane)}")
    e("s_waitcnt lgkmcnt(0)")
    for d, k in ((d0, k0), (d1, k1)):
        e(f"v_min_u32 {v(k)}, 63, {v(d)}")
        e(f"v_sub_u32 {v(k)}, 63, {v(k)}")
        e(f"v_lshlrev_b32 {v(k)}, 2, {v(k)}")
    e(f"v_add_u32 {v(hv)}, {s(s_tb)}, {v(k0)}")
    e(f"v_add_u32 {v(hs)}, {s(s_tb)}, {v(k1)}")
    e(f"ds_add_rtn_u32 {v(o0)}, {v(hv)}, {v(vOne)} offset:{T_H1}")
    e(f"s_mov_b64 exec, {s(s_ex,2)}")
    e(f"ds_add_rtn_u32 {v(o1)}, {v(hs)}, {v(vOne)} offset:{T_H1}")
    e("s_mov_b64 exec, -1")
    e(f"ds_read_b32 {v(hv)}, {v(ad)} offset:{T_H1}")
    e(f"v_lshl_or_b32 {v(d0)}, {v(d0)}, 8, {v(vLane)}")
    e(f"v_lshl_or_b32 {v(d1)}, {v(d1)}, 8, {v(vLane)}")
    e(f"v_or_b32 {v(d1)}, 64, {v(d1)}")
    e("s_waitcnt lgkmcnt(0)")
    e(f"v_mov_b32 {v(hs)}, {v(hv)}")
    wave_incl_scan(e, hs)
    e(f"v_sub_u32 {v(hs)}, {v(hs)}, {v(hv)}")
    e(f"ds_bpermute_b32 {v(k0)}, {v(k0)}, {v(hs)}")
    e(f"ds_bpermute_b32 {v(k1)}, {v(k1)}, {v(hs)}")
    e(f"v_cmp_gt_u32 vcc, {NSPLIT}, {v(vLane)}")
    e(f"v_lshlrev_b32 {v(jj)}, 1, {v(vLane)}")
    e(f"v_subrev_u32 {v(jj)}, {NSPLIT}, {v(jj)}")
    e(f"v_cndmask_b32 {v(jj)}, {v(jj)}, {v(vLane)}, vcc")
    e(f"v_cndmask_b32 {v(sp)}, 0, {v(vOne)}, vcc")
    e(f"v_lshl_add_u32 {v(jj)}, {v(jj)}, 2, {s(s_tb)}")
    e(f"v_add_u32 {v(jj)}, {T_SORT}, {v(jj)}")
    e("s_waitcnt lgkmcnt(0)")
    e(f"v_add_u32 {v(k0)}, {v(k0)}, {v(o0)}")
    e(f"v_add_u32 {v(k1)}, {v(k1)}, {v(o1)}")
    e(f"v_lshl_add_u32 {v(k0)}, {v(k0)}, 2, {s(s_tb)}")
    e(f"v_lshl_add_u32 {v(k1)}, {v(k1)}, 2, {s(s_tb)}")
    e(f"ds_write_b32 {v(k0)}, {v(d0)} offset:{T_SORT}")
    e(f"s_mov_b64 exec, {s(s_ex,2)}")
    e(f"ds_write_b32 {v(k1)}, {v(d1)} offset:{T_SORT}")
    e("s_mov_b64 exec, -1")
    e(f"ds_read2_b32 {v(q4,2)}, {v(jj)} offset0:0 offset1:1")
    e("s_waitcnt lgkmcnt(0)")
    e(f"v_lshrrev_b32 {v(d0)}, 8, {v(q4)}")
    e(f"v_lshrrev_b32 {v(d1)}, 8, {v(q4+1)}")
    e(f"v_max_u32 {v(ln)}, {v(d0)}, {v(d1)}")
    e(f"v_add_u32 {v(d0)}, 1, {v(d0)}")
    e(f"v_lshrrev_b32 {v(d0)}, 1, {v(d0)}")
    e(f"v_cndmask_b32 {v(ln)}, {v(ln)}, {v(d0)}, vcc")
    e(f"v_min_u32 {v(k0)}, 63, {v(ln)}")
    e(f"v_sub_u32 {v(k0)}, 63, {v(k0)}")
    e(f"v_lshlrev_b32 {v(k0)}, 2, {v(k0)}")
    e(f"v_add_u32 {v(hv)}, {s(s_tb)}, {v(k0)}")
    e(f"ds_add_rtn_u32 {v(o0)}, {v(hv)}, {v(vOne)} offset:{T_H2}")
    e(f"ds_read_b32 {v(hv)}, {v(ad)} offset:{T_H2}")
    e(f"v_and_b32 {v(q4)}, 0xff, {v(q4)}")
    e(f"v_and_b32 {v(q4+1)}, 0xff, {v(q4+1)}")
    e("s_waitcnt lgkmcnt(0)")
    e(f"v_mov_b32 {v(hs)}, {v(hv)}")
    wave_incl_scan(e, hs)
    e(f"v_sub_u32 {v(hs)}, {v(hs)}, {v(hv)}")
    e(f"ds_bpermute_b32 {v(k0)}, {v(k0)}, {v(hs)}")
    e("s_waitcnt lgkmcnt(0)")
    e(f"v_add_u32 {v(k0)}, {v(k0)}, {v(o0)}")
    e(f"v_lshrrev_b32 {v(k1)}, 4, {v(k0)}")
    e(f"v_lshl_add_u32 {v(hv)}, {v(k1)}, 2, {s(s_tb)}")
    e(f"v_max_u32 {v(ln)}, 1, {v(ln)}")
    e(f"ds_max_u32 {v(hv)}, {v(ln)} offset:{T_TL}")
    e(f"v_mov_b32 {v(hs)}, {s(s_tb)}")
    e(f"ds_read_b128 {v(q4+4,4)}, {v(hs)} offset:{T_TL}")
    e.c("slot table: byte offset of the output row, or the mark of a second half")
    e(f"s_mul_i32 {s(s_t0)}, {s(s_mybk)}, {NPB}")
    e(f"v_add_u32 {v(q4+2)}, {s(s_t0)}, {v(q4)}")
    e(f"v_add_u32 {v(q4+3)}, {s(s_t0)}, {v(q4+1)}")
    e(f"v_lshlrev_b32 {v(q4+2)}, 9, {v(q4+2)}")
    e(f"v_lshlrev_b32 {v(q4+3)}, 9, {v(q4+3)}")
    e(f"v_mov_b32 {v(d1)}, {hex(SPLITMARK)}")
    e(f"v_cndmask_b32 {v(q4+3)}, {v(q4+3)}, {v(d1)}, vcc")
    e(f"s_lshl_b32 {s(s_t0)}, {s(s_rp)}, 9")
    e(f"s_add_u32 {s(s_t0)}, {s(s_t0)}, {L_SLOTN}")
    e(f"v_lshl_add_u32 {v(hv)}, {v(k0)}, 3, {s(s_t0)}")
    e(f"ds_write_b64 {v(hv)}, {v(q4+2,2)}")
    e("s_waitcnt lgkmcnt(1)")
    e(f"v_mov_b32 {v(o1)}, 0")
    for t in range(3):
        e(f"v_cmp_lt_u32 {s(s_ex,2)}, {t}, {v(k1)}")
        e(f"v_add_u32 {v(d0)}, {v(o1)}, {v(q4+4+t)}")
        e("s_nop 0")
        e(f"v_cndmask_b32 {v(o1)}, {v(o1)}, {v(d0)}, {s(s_ex,2)}")
    e(f"v_and_b32 {v(k0)}, 15, {v(k0)}")
    e(f"v_lshlrev_b32 {v(k0)}, 1, {v(k0)}")
    e(f"v_lshl_add_u32 {v(k0)}, {v(o1)}, 5, {v(k0)}")
    e(f"v_lshl_or_b32 {v(d0)}, {v(sp)}, 16, {v(k0)}")
    e(f"v_add_u32 {v(d1)}, 1, {v(k0)}")
    e(f"v_lshl_add_u32 {v(q4)}, {v(q4)}, 2, {s(s_tb)}")
    e(f"v_lshl_add_u32 {v(q4+1)}, {v(q4+1)}, 2, {s(s_tb)}")
    e(f"ds_write_b32 {v(q4)}, {v(d0)} offset:{T_INFO}")
    e("s_not_b64 exec, vcc")
    e(f"ds_write_b32 {v(q4+1)}, {v(d1)} offset:{T_INFO}")
    e("s_mov_b64 exec, -1")
    e("s_waitcnt lgkmcnt(0)")
    e("LB_nosort:")
    e("s_barrier")
    e(f"v_mov_b32 {v(q[0])}, 0")
    e(f"ds_read_b128 {v(q4,4)}, {v(q[0])} offset:{T_TL}")
    e(f"ds_read_b128 {v(q4+4,4)}, {v(q[0])} offset:{TB + T_TL}")
    for k in range(7):
        e(f"ds_read_b32 {v(q[3+k])}, {v(vRec+4*k+3)} offset:{T_INFO}")
    e("s_waitcnt lgkmcnt(7)")
    for k in range(8):
        e(f"v_readfirstlane_b32 {s(s_TL+k)}, {v(q4+k)}")
    e("s_nop 0")
    e.c("s_TL holds running sums of the tile lengths; a job that does not fit is halved")
    e(f"s_mov_b32 {s(s_t1)}, 0")
    for h in range(2):
        for k in range(1, 4):
            e(f"s_add_u32 {s(s_TL+4*h+k)}, {s(s_TL+4*h+k)}, {s(s_TL+4*h+k-1)}")
        e(f"s_add_u32 {s(s_t0)}, {s(s_J+h)}, 1")
        e(f"s_lshr_b32 {s(s_t0)}, {s(s_t0)}, 1")
        e(f"s_cmp_gt_u32 {s(s_TL+4*h+3)}, {SC}")
        e(f"s_cselect_b32 {s(s_cap+h)}, {s(s_t0)}, {s(s_cap+h)}")
        e(f"s_cselect_b32 {s(s_t1)}, 1, {s(s_t1)}")
    e(f"s_cmp_lg_u32 {s(s_t1)}, 0")
    e("s_cbranch_scc1 LB_again")
    e(f"s_mul_i32 {s(s_t0)}, {s(s_rp)}, {MS}")
    e(f"s_add_u32 {s(s_t0)}, {s(s_t0)}, {L_META0}")
    e(f"s_add_u32 {s(s_t1)}, {s(s_t0)}, {SC * 256}")
    for k in range(7):
        inf, rk = q[3 + k], vRank + k
        if k == 0:
            e("s_waitcnt lgkmcnt(0)")
        e(f"v_lshrrev_b32 {v(q[0])}, 16, {v(inf)}")
        e(f"v_and_b32 {v(inf)}, 0xffff, {v(inf)}")
        e(f"v_and_b32 {v(q[1])}, {v(q[0])}, {v(rk)}")
        e(f"v_lshrrev_b32 {v(rk)}, {v(q[0])}, {v(rk)}")
        e(f"v_lshlrev_b32 {v(rk)}, 5, {v(rk)}")
        e(f"v_add3_u32 {v(inf)}, {v(inf)}, {v(rk)}, {v(q[1])}")
        e(f"v_lshl_add_u32 {v(rk)}, {v(inf)}, 3, {s(s_t0)}")
        e(f"v_lshl_add_u32 {v(inf)}, {v(inf)}, 2, {s(s_t1)}")
        if opt.payload:
            e(f"v_lshlrev_b32 {v(vPos+k)}, 5, {v(vPos+k)}")
        else:
            e(f"v_and_b32 {v(vPos+k)}, 0xfffff, {v(vRec+4*k+2)}")
            e(f"v_lshlrev_b32 {v(vPos+k)}, 5, {v(vPos+k)}")
        e(f"s_mov_b64 exec, {s(s_m+2*k,2)}")
        e(f"ds_write_b64 {v(rk)}, {v(vRec+4*k,2)}")
        e(f"ds_write_b32 {v(inf)}, {v(vPos+k)}")
        e("s_mov_b64 exec, -1")
    e(f"s_mov_b32 {s(s_rho)}, 0")
    e("s_waitcnt lgkmcnt(0)")
    e("s_barrier")

    e("LB_round:")
    e(f"s_cmp_eq_u32 {s(s_rho)}, 0")
    e(f"s_cselect_b32 {s(s_t0)}, {s(s_act)}, {s(s_act+1)}")
    e(f"s_cselect_b32 {s(s_isfirst)}, {s(s_first)}, {s(s_first+1)}")
    e(f"s_cselect_b32 {s(s_t1)}, {s(s_r0)}, {s(s_r0+1)}")
    e(f"s_cselect_b32 {s(s_t2)}, {s(s_J)}, {s(s_J+1)}")
    e(f"s_cselect_b32 {s(s_t3)}, {s(s_tot)}, {s(s_tot+1)}")
    e(f"s_cselect_b64 {s(P,2)}, {s(s_TL,2)}, {s(s_TL+4,2)}")
    e(f"s_cselect_b64 {s(P+2,2)}, {s(s_TL+2,2)}, {s(s_TL+6,2)}")
    e(f"s_cmp_eq_u32 {s(s_t0)}, 0")
    e("s_cbranch_scc1 LB_round_end")
    e(f"s_add_u32 {s(s_t1)}, {s(s_t1)}, {s(s_t2)}")
    e(f"s_cmp_eq_u32 {s(s_t1)}, {s(s_t3)}")
    e(f"s_cselect_b32 {s(s_islast)}, 1, 0")
    e(f"s_mov_b32 {s(s_sum)}, {s(P+3)}")
    e(f"s_mov_b32 {s(s_t0)}, 0")
    e(f"s_mov_b32 {s(s_t1)}, {s(P)}")
    for t in range(1, 4):
        e(f"s_cmp_eq_u32 {s(s_tile)}, {t}")
        e(f"s_cselect_b32 {s(s_t0)}, {s(P+t-1)}, {s(s_t0)}")
        e(f"s_cselect_b32 {s(s_t1)}, {s(P+t)}, {s(s_t1)}")
    e(f"s_mul_i32 {s(s_t2)}, {s(s_rho)}, {MS}")
    e(f"s_add_u32 {s(s_t2)}, {s(s_t2)}, {L_META0}")
    e(f"s_lshl_b32 {s(s_abeg)}, {s(s_t0)}, 10")
    e(f"s_lshl_b32 {s(s_t0)}, {s(s_t0)}, 8")
    e(f"s_lshl_b32 {s(s_t1)}, {s(s_t1)}, 8")
    e(f"s_add_u32 {s(s_mbeg)}, {s(s_t2)}, {s(s_t0)}")
    e(f"s_add_u32 {s(s_mend)}, {s(s_t2)}, {s(s_t1)}")
    e.c("gather the edge attributes into step-major rows")
    e(f"s_lshl_b32 {s(s_t0)}, {s(s_w)}, 7")
    e(f"s_add_u32 {s(s_t0)}, {s(s_t0)}, {s(s_t2)}")
    e(f"s_add_u32 {s(s_t0)}, {s(s_t0)}, {SC * 256}")
    e(f"v_lshrrev_b32 {v(t0)}, 1, {v(vLane)}")
    e(f"v_lshl_add_u32 {v(t0)}, {v(t0)}, 2, {s(s_t0)}")
    for k in range(8):
        e(f"ds_read_b32 {v(R+k)}, {v(t0)} offset:{1024 * k}")
    e(f"v_bfe_u32 {v(t1)}, {v(vLane)}, 4, 1")
    e(f"v_xor_b32 {v(t1)}, {v(t1)}, {v(vLane)}")
    e(f"v_and_b32 {v(t1)}, 1, {v(t1)}")
    e(f"v_lshlrev_b32 {v(t1)}, 4, {v(t1)}")
    e(f"s_lshl_b32 {s(s_t0)}, {s(s_chi)}, 10")
    e(f"s_add_u32 {s(s_t0)}, {s(s_t0)}, {WRAD_OFF}")
    e(f"v_lshl_add_u32 {v(t2)}, {v(vLane)}, 4, {s(s_t0)}")
    for p in range(5):
        e(f"buffer_load_dwordx4 {v(W+4*p,4)}, {v(t2)}, {s(S_WS,4)}, 0 offen" + (" offset:2048" if p & 1 else ""))
        if p & 1:
            e(f"v_add_u32 {v(t2)}, 4096, {v(t2)}")
    e(f"s_mov_b32 {s(s_t0)}, {s(s_w)}")
    e("s_waitcnt lgkmcnt(0)")
    ant = " nt" if opt.b_nt_a else ""
    for k in range(8):
        e(f"s_cmp_ge_u32 {s(s_t0)}, {s(s_sum)}")
        e("s_cbranch_scc1 LB_adone")
        e(f"s_lshl_b32 m0, {s(s_t0)}, 10")
        e(f"v_add_u32 {v(R+k)}, {v(R+k)}, {v(t1)}")
        e(f"buffer_load_dwordx4 {v(R+k)}, {s(S_A,4)}, 0 offen{ant} lds")
        e(f"s_add_u32 {s(s_t0)}, {s(s_t0)}, 8")
    e("LB_adone:")

    wraps = []

    def adv():
        a, b = e.label("wrap"), e.label("back")
        wraps.append((a, b))
        e(f"s_add_u32 {s(s_pm)}, {s(s_pm)}, {s(s_pinc)}")
        e(f"s_cmp_eq_u32 {s(s_pm)}, {s(s_mend)}")
        e(f"s_cbranch_scc1 {a}")
        e(f"{b}:")

    def src_read():
        return [f"v_add_u32 {v(aS)}, {s(s_pm)}, {v(cS)}",
                f"ds_read_u16 {v(SRC)}, {v(aS)} offset:6",
                f"ds_read_u16 {v(SRC+1)}, {v(aS)} offset:14"]

    def ring_next():
        return [f"s_add_u32 {s(s_r)}, {s(s_r)}, 2048",
                f"s_cmp_eq_u32 {s(s_r)}, {s(s_rend)}",
                f"s_cselect_b32 {s(s_r)}, {s(s_rbeg)}, {s(s_r)}"]

    def dma():
        return [f"s_mov_b32 m0, {s(s_r)}",
                f"v_lshl_add_u32 {v(VO)}, {v(SRC)}, 9, {v(cD0)}",
                f"buffer_load_dwordx4 {v(VO)}, {s(S_X,4)}, {s(s_psoff)} offen lds",
                f"s_add_u32 m0, {s(s_r)}, 1024",
                f"v_lshl_add_u32 {v(VO+1)}, {v(SRC+1)}, 9, {v(cD1)}",
                f"buffer_load_dwordx4 {v(VO+1)}, {s(S_X,4)}, {s(s_psoff)} offen lds"]

    e.c("prime the x ring: three steps in flight")
    e(f"s_mov_b32 {s(s_pm)}, {s(s_mbeg)}")
    e(f"s_movk_i32 {s(s_pinc)}, 256")
    e(f"s_mov_b32 {s(s_pleft)}, 4")
    e(f"s_xor_b32 {s(s_psoff)}, {s(s_rho)}, 1")
    e(f"s_lshl_b32 {s(s_psoff)}, {s(s_psoff)}, 1")
    e(f"s_or_b32 {s(s_psoff)}, {s(s_psoff)}, {s(s_chi)}")
    e(f"s_lshl_b32 {s(s_psoff)}, {s(s_psoff)}, 6")
    e(f"s_mov_b32 {s(s_r)}, {s(s_rbeg)}")
    for g in range(3):
        for ln_ in src_read():
            e(ln_)
        e("s_waitcnt lgkmcnt(0)")
        for ln_ in dma() + ring_next():
            e(ln_)
        adv()
    for ln_ in src_read():
        e(ln_)
    e(f"s_mov_b32 {s(s_yoff)}, {s(s_mbeg)}")
    e(f"s_mov_b32 {s(s_aoff)}, {s(s_abeg)}")
    e(f"v_add_u32 {v(aA)}, {s(s_aoff)}, {v(cA)}")
    e(f"v_add_u32 {v(aY)}, {s(s_yoff)}, {v(cY)}")
    e(f"v_add_u32 {v(aX0)}, {s(s_r)}, {v(cX0)}")
    e(f"v_add_u32 {v(aX1)}, {s(s_r)}, {v(cX1)}")
    e("s_waitcnt vmcnt(4)")
    e("s_barrier")
    e(f"ds_read_b128 {v(AF,4)}, {v(aA)}")
    e(f"ds_read_b64 {v(YR,2)}, {v(aY)}")
    e(f"ds_read_b128 {v(XR,4)}, {v(aX0)}")
    e(f"ds_read_b128 {v(XR+4,4)}, {v(aX1)}")

    def ysel(j, neg, fma):
        reg = YF + 2 * ((j - 1) // 2)
        hi = (j - 1) & 1
        if opt.ysep:
            reg, hi = YF + 2 * (j - 1), 0
        if fma:
            m = f" op_sel:[0,{hi},0] op_sel_hi:[1,{hi},1]"
            if neg:
                m += " neg_lo:[0,1,0] neg_hi:[0,1,0]"
        return v(reg, 2), m

    def pk_acc(name, a, b):
        return [f"v_pk_fma_f32 {v(pair(name,i),2)}, {v(a+2*i,2)}, {v(b+2*i,2)}, {v(pair(name,i),2)}" for i in range(8)]

    def pk_mul(r):
        return [f"v_pk_mul_f32 {v(r+2*i,2)}, {v(FX+2*i,2)}, {v(r+2*i,2)}" for i in range(8)]

    def pk_accy(name, a, j, neg=False):
        y, m = ysel(j, neg, True)
        return [f"v_pk_fma_f32 {v(pair(name,i),2)}, {v(a+2*i,2)}, {y}, {v(pair(name,i),2)}{m}" for i in range(8)]

    def one_pass(m):
        R0, R1, R2 = R, R + 16, R + 32
        if m == 0:
            paths = [0, 2]
            zero = ["P0", "Q1", "Q2", "Q3"]
            done = zero
            pks = pk_acc("P0", FX, R0) + pk_mul(R1) + pk_accy("Q1", R1, 1) + pk_accy("Q2", R1, 2) + pk_accy("Q3", R1, 3)
        else:
            paths = [3, 1, 4]
            zero = {1: ["S1", "D", "C2", "C3"], 2: ["S2", "C1"], 3: ["S3"]}[m]
            done = {1: ["S1"], 2: ["S2", "C3"], 3: ["S3", "D", "C1", "C2"]}[m]
            nx, pv = m % 3 + 1, (m + 1) % 3 + 1
            pks = (pk_acc(f"S{m}", FX, R0) + pk_mul(R1) + pk_accy("D", R1, m) + pk_mul(R2)
                   + pk_accy(f"C{nx}", R2, pv) + pk_accy(f"C{pv}", R2, nx, True))
        e.c(f"pass over component {m}")
        for b in zero:
            for i in range(8):
                e(f"v_mov_b64 {v(pair(b,i),2)}, 0")
        top = e.label(f"pass{m}")
        e(f"{top}:")
        e("s_waitcnt lgkmcnt(0)")
        fill = dma() + ring_next()
        for i in range(8):
            fill.append(f"v_lshlrev_b32 {v(FX+2*i)}, 16, {v(XR+i)}")
            fill.append(f"v_and_b32 {v(FX+2*i+1)}, {s(s_msk)}, {v(XR+i)}")
        ys = 2 if opt.ysep else 1
        fill += [f"v_lshlrev_b32 {v(YF)}, 16, {v(YR)}", f"v_and_b32 {v(YF+ys)}, {s(s_msk)}, {v(YR)}",
                 f"v_lshlrev_b32 {v(YF+2*ys)}, 16, {v(YR+1)}"]
        cuts = [0, 9, 15] if m else [0, 9]
        for i, ln_ in enumerate(fill):
            if i in cuts:
                k = cuts.index(i)
                e(f"v_mfma_f32_32x32x16_bf16 {v(R+16*k,16)}, {v(W+4*paths[k],4)}, {v(AF,4)}, 0")
            e(ln_)
        adv()
        e(f"s_add_u32 {s(s_yoff)}, {s(s_yoff)}, 256")
        e(f"s_add_u32 {s(s_aoff)}, {s(s_aoff)}, 1024")
        e(f"s_cmp_eq_u32 {s(s_yoff)}, {s(s_mend)}")
        e(f"s_cselect_b32 {s(s_yoff)}, {s(s_mbeg)}, {s(s_yoff)}")
        e(f"s_cselect_b32 {s(s_aoff)}, {s(s_abeg)}, {s(s_aoff)}")
        e(f"v_add_u32 {v(aA)}, {s(s_aoff)}, {v(cA)}")
        e(f"v_add_u32 {v(aY)}, {s(s_yoff)}, {v(cY)}")
        e(f"ds_read_b128 {v(AF,4)}, {v(aA)}")
        e(f"ds_read_b64 {v(YR,2)}, {v(aY)}")
        for ln_ in src_read():
            e(ln_)
        e(f"v_add_u32 {v(aX0)}, {s(s_r)}, {v(cX0)}")
        e(f"v_add_u32 {v(aX1)}, {s(s_r)}, {v(cX1)}")
        cut = len(pks) - opt.x_tail
        for ln_ in pks[:cut]:
            e(ln_)
        e("s_waitcnt vmcnt(4)")
        e(f"ds_read_b128 {v(XR,4)}, {v(aX0)}")
        e(f"ds_read_b128 {v(XR+4,4)}, {v(aX1)}")
        for ln_ in pks[cut:]:
            e(ln_)
        e(f"s_cmp_lg_u32 {s(s_yoff)}, {s(s_mbeg)}")
        e(f"s_cbranch_scc1 {top}")
        for b in done:
            for i in range(8):
                p_ = pair(b, i)
                e(f"v_cvt_pk_bf16_f32 {v(blk[b][0]+i)}, {v(p_)}, {v(p_+1)}")

    e(f"s_cmp_eq_u32 {s(s_rho)}, 0")
    e("s_cbranch_scc1 LB_vec")
    e("LB_scal:")
    one_pass(0)
    e(f"s_cmp_eq_u32 {s(s_rho)}, 0")
    e("s_cbranch_scc1 LB_epi")
    e("s_barrier")
    e("LB_vec:")
    one_pass(1)
    e("s_barrier")
    one_pass(2)
    e("s_barrier")
    one_pass(3)
    e(f"s_cmp_lg_u32 {s(s_rho)}, 0")
    e("s_cbranch_scc1 LB_epi")
    e("s_barrier")
    e("s_branch LB_scal")

    e("LB_epi:")
    CHN = [POOL, POOL + 40]
    X1 = [CHN[0] + 24, CHN[0] + 28, CHN[0] + 32, CHN[0] + 36, CHN[1] + 24, CHN[1] + 28, CHN[1] + 32, CHN[1] + 36]
    X2 = [F + 4 * i for i in range(8)] + [POOL + 80 + 4 * i for i in range(4)]
    WF = X1 + X2
    e("s_waitcnt lgkmcnt(0)")
    e(f"s_mul_i32 {s(s_t0)}, {s(s_chi)}, 20480")
    e(f"s_add_u32 {s(s_t0)}, {s(s_t0)}, {WSI_OFF}")
    e(f"v_lshl_add_u32 {v(t0)}, {v(vLane)}, 4, {s(s_t0)}")
    for f in range(20):
        e(f"buffer_load_dwordx4 {v(WF[f],4)}, {v(t0)}, {s(S_WS,4)}, 0 offen offset:{(f % 4) * 1024}")
        if f % 4 == 3 and f < 19:
            e(f"v_add_u32 {v(t0)}, 4096, {v(t0)}")
    e(f"s_lshl_b32 {s(s_t0)}, {s(s_w)}, 14")
    e(f"v_lshl_add_u32 {v(t1)}, {v(vLane)}, 4, {s(s_t0)}")
    e(f"v_xor_b32 {v(t2)}, 0x4000, {v(t1)}")
    e("s_waitcnt vmcnt(12)")
    e("s_barrier")
    terms = [[("P0", 0), ("D", 1)]] + [[(f"Q{j}", 2), (f"S{j}", 3), (f"C{j}", 4)] for j in (1, 2, 3)]

    def chain(b, par):
        d = CHN[par] + 8 * b
        first = True
        for name, mu in terms[b]:
            for t in range(2):
                c = "0" if first else v(d, 16)
                e(f"v_mfma_f32_32x32x16_bf16 {v(d,16)}, {v(blk[name][0]+4*t,4)}, {v(WF[mu*4+t*2+par],4)}, {c}")
                first = False

    def send(b, par):
        d = CHN[par] + 8 * b + 8
        for i in range(2):
            e(f"ds_write_b128 {v(t1)}, {v(d+4*i,4)} offset:{((b * 2 + par) * 2 + i) * 1024}")

    chain(0, 0)
    chain(0, 1)
    e("s_nop 7")
    send(0, 0)
    e("s_waitcnt vmcnt(0)")
    for b in (1, 2, 3):
        chain(b, 0)
        e("s_nop 5")
        send(b - 1, 1)
        chain(b, 1)
        e("s_nop 5")
        send(b, 0)
    e("s_nop 9")
    send(3, 1)
    GET = PS
    NODE = PS + 64
    e(f"s_lshl_b32 {s(s_t0)}, {s(s_rho)}, 9")
    e(f"s_lshl_b32 {s(s_t1)}, {s(s_tile)}, 7")
    e(f"s_add_u32 {s(s_t0)}, {s(s_t0)}, {s(s_t1)}")
    e(f"s_lshl_b32 {s(s_t1)}, {s(s_chi)}, 6")
    e(f"s_add_u32 {s(s_t0)}, {s(s_t0)}, {s(s_t1)}")
    e(f"s_add_u32 {s(s_t0)}, {s(s_t0)}, {L_SLOTN}")
    e(f"v_lshrrev_b32 {v(t0)}, 5, {v(vLane)}")
    e(f"v_lshl_add_u32 {v(t0)}, {v(t0)}, 4, {s(s_t0)}")
    e(f"ds_read_b128 {v(NODE,4)}, {v(t0)}")
    e(f"ds_read_b128 {v(NODE+4,4)}, {v(t0)} offset:32")
    e("s_waitcnt lgkmcnt(0)")
    e("s_barrier")
    for i in range(16):
        e(f"ds_read_b128 {v(GET+4*i,4)}, {v(t2)} offset:{i * 1024}")
        if i == 7:
            e(f"v_mov_b32 {v(t0)}, {hex(SPLITMARK)}")
            for k in range(4):
                e(f"v_cmp_eq_u32 {s(s_m+2*k,2)}, {v(NODE+2*k+1)}, {v(t0)}")
    e(f"v_and_b32 {v(t0)}, 31, {v(vLane)}")
    e(f"v_lshlrev_b32 {v(t0)}, 2, {v(t0)}")

    def K(b, par, r):
        return CHN[par] + 8 * b + r

    for i in range(16):
        b, par, hf = i >> 2, (i >> 1) & 1, i & 1
        e(f"s_waitcnt lgkmcnt({15 - i})")
        for k in range(2):
            d = K(b, par, 4 * hf + 2 * k)
            e(f"v_pk_add_f32 {v(d,2)}, {v(d,2)}, {v(GET+4*i+2*k,2)}")
    e("s_barrier")
    e.c("fold the second half of a split node into the first")
    for k in range(4):
        e(f"s_mov_b64 exec, {s(s_m+2*k,2)}")
        for b in range(4):
            for par in range(2):
                e(f"v_add_f32 {v(K(b,par,2*k))}, {v(K(b,par,2*k))}, {v(K(b,par,2*k+1))}")
    e("s_mov_b64 exec, -1")
    e(f"s_and_b32 {s(s_t0)}, {s(s_isfirst)}, {s(s_islast)}")
    e(f"s_cmp_eq_u32 {s(s_t0)}, 0")
    e("s_cbranch_scc1 LB_multi")
    e("LB_gate:")
    for r in range(8):
        e(f"v_add_u32 {v(NODE+r)}, {v(NODE+r)}, {v(t0)}")
    G = GET
    ont = " nt" if opt.b_nt_out else ""
    e(f"s_mov_b32 {s(s_t0)}, 0xbfb8aa3b")
    for r in range(8):
        for par in range(2):
            e(f"v_mul_f32 {v(G+par*8+r)}, {s(s_t0)}, {v(K(0,par,r))}")
        e(f"v_cvt_pk_bf16_f32 {v(G+16+r)}, {v(K(0,0,r))}, {v(K(0,1,r))}")
        e(f"buffer_store_dword {v(G+16+r)}, {v(NODE+r)}, {s(S_OUT,4)}, 0 offen{ont}")
    for i in range(16):
        e(f"v_exp_f32 {v(G+i)}, {v(G+i)}")
    for i in range(16):
        e(f"v_add_f32 {v(G+i)}, 1.0, {v(G+i)}")
    for i in range(16):
        e(f"v_rcp_f32 {v(G+i)}, {v(G+i)}")
    for b in (1, 2, 3):
        for par in range(2):
            for k in range(4):
                d = K(b, par, 2 * k)
                e(f"v_pk_mul_f32 {v(d,2)}, {v(d,2)}, {v(G+par*8+2*k,2)}")
        for r in range(8):
            o = G + 16 + 8 * b + r
            e(f"v_cvt_pk_bf16_f32 {v(o)}, {v(K(b,0,r))}, {v(K(b,1,r))}")
            e(f"buffer_store_dword {v(o)}, {v(NODE+r)}, {s(S_OUT,4)}, 0 offen offset:{128 * b}{ont}")
    e("LB_round_end:")
    e(f"s_add_u32 {s(s_rho)}, {s(s_rho)}, 1")
    e(f"s_cmp_eq_u32 {s(s_rho)}, 1")
    e("s_cbranch_scc1 LB_round")
    for h in range(2):
        e(f"s_add_u32 {s(s_r0+h)}, {s(s_r0+h)}, {s(s_J+h)}")
        e(f"s_mov_b32 {s(s_first+h)}, 0")
        e(f"s_cmp_lg_u32 {s(s_r0+h)}, {s(s_tot+h)}")
        e(f"s_cselect_b32 {s(s_act+h)}, 1, 0")
    e(f"s_or_b32 {s(s_t0)}, {s(s_act)}, {s(s_act+1)}")
    e(f"s_cmp_eq_u32 {s(s_t0)}, 0")
    e("s_cbranch_scc1 LB_end")
    e("LB_again:")
    e("s_waitcnt vmcnt(0) lgkmcnt(0)")
    e("s_barrier")
    e("s_branch LB_job")

    e("LB_multi:")
    e.c("bucket processed in several jobs: carry the ungated sums through the workspace")
    PO = PS + 72
    e(f"v_mov_b32 {v(t1)}, {hex(X_BYTES)}")
    for r in range(8):
        e(f"v_min_u32 {v(PO+r)}, {v(NODE+r)}, {v(t1)}")
        e(f"v_lshl_add_u32 {v(PO+r)}, {v(PO+r)}, 1, {v(t0)}")
    e(f"s_cmp_lg_u32 {s(s_isfirst)}, 0")
    e("s_cbranch_scc1 LB_multi_st")
    for b in range(4):
        for par in range(2):
            for r in range(8):
                e(f"buffer_load_dword {v(GET+par*8+r)}, {v(PO+r)}, {s(S_PART,4)}, 0 offen offset:{(b*2+par)*128} sc1")
        e("s_waitcnt vmcnt(0)")
        for par in range(2):
            for r in range(8):
                e(f"v_add_f32 {v(K(b,par,r))}, {v(K(b,par,r))}, {v(GET+par*8+r)}")
    e(f"s_cmp_lg_u32 {s(s_islast)}, 0")
    e("s_cbranch_scc1 LB_gate")
    e("LB_multi_st:")
    for b in range(4):
        for par in range(2):
            for r in range(8):
                e(f"buffer_store_dword {v(K(b,par,r))}, {v(PO+r)}, {s(S_PART,4)}, 0 offen offset:{(b*2+par)*128}")
        e("s_waitcnt vmcnt(0)")
    e("s_branch LB_round_end")

    for a, b in wraps:
        e(f"{a}:")
        e(f"s_mov_b32 {s(s_pm)}, {s(s_mbeg)}")
        e(f"s_add_u32 {s(s_psoff)}, {s(s_psoff)}, 128")
        e(f"s_and_b32 {s(s_psoff)}, {s(s_psoff)}, 511")
        e(f"s_sub_u32 {s(s_pleft)}, {s(s_pleft)}, 1")
        e(f"s_cmp_lg_u32 {s(s_pleft)}, 0")
        e(f"s_cbranch_scc1 {b}")
        e(f"s_mov_b32 {s(s_pm)}, {L_INV}")
        e(f"s_mov_b32 {s(s_pinc)}, 0")
        e(f"s_branch {b}")
    e("LB_end:")
    e("s_endpgm")
    return dict(vgpr=va.p, sgpr=sa.p)
```

```python
import sys, argparse, re
from asmlib import *
from common import *
import kern_a, kern_b

class Opt: pass

def build(**kw):
    o = Opt()
    d = dict(payload=0, a_nt_in=0, a_nt_out=0, b_nt_a=0, b_nt_out=0, x_tail=16, ysep=1)
    d.update(kw)
    o.__dict__.update(d)
    ref = open("cdna_kernels/" + NAME + ".s.ref").read().split("\n")
    head = [l for l in ref[:13]]
    e = Emit()
    ra = kern_a.gen(e, o)
    rb = kern_b.gen(e, o)
    out = "\n".join(head) + "\n"
    out += f"; @launch kernel={KA} grid=(256,1,1) block=({kern_a.A_THREADS},1,1) lds={kern_a.lds_bytes(o)}\n"
    out += f"; @launch kernel={KB} grid=(256,1,1) block=({kern_b.B_THREADS},1,1) lds={kern_b.lds_bytes(o)}\n"
    out += '.amdgcn_target "amdgcn-amd-amdhsa--gfx950"\n.text\n'
    out += f".globl {KA}\n.globl {KB}\n"
    out += e.text()
    out += '.section .rodata,"a"\n.p2align 6\n'
    out += descriptor(KA, ra["vgpr"], ra["sgpr"], (ra["vgpr"] + 3) // 4 * 4)
    out += ".p2align 6\n"
    out += descriptor(KB, rb["vgpr"], rb["sgpr"], (rb["vgpr"] + 3) // 4 * 4)
    return out, ra, rb

if __name__ == "__main__":
    path = sys.argv[1]
    kw = {k: int(v) for k, v in (a.split("=") for a in sys.argv[2:])}
    txt, ra, rb = build(**kw)
    open(path, "w").write(txt)
    print(path, ra, rb, "lines", txt.count("\n"))
```

```python
from asmlib import *
from common import *

B_THREADS = 512
SC = 62
JMAX = 1792
NSPLIT = 128 - NPB
RING_W = 3 * 2048
L_RING = 0
L_A = 8 * RING_W
L_META0 = L_A + SC * 1024
MS = SC * 384
L_INV = L_META0 + 2 * MS
L_SLOTN = L_INV + 768
L_END = L_SLOTN + 1024
assert L_META0 + MS >= 131072 and L_END <= 163840
T_CNT, T_H1, T_H2, T_TL, T_SORT, T_INFO, TB = 0, 512, 768, 1024, 1088, 1664, 2304
L_WSUM = 2 * TB
L_POS = 8192
PAT = 0xC4000000
SPLITMARK = 0x7F000000


def lds_bytes(opt):
    return L_END


def gen(e, opt):
    sa = Alloc(3, 102)
    s_t0 = sa()
    S_X, S_A, S_WS, S_OUT, S_PART = (sa(4, 4) for _ in range(5))
    P = sa(8, 4)
    s_m = sa(14, 2)
    s_ex = sa(2, 2)
    s_w, s_chi, s_tile, s_rp = sa(), sa(), sa(), sa()
    s_bk0, s_mybk = sa(), sa()
    s_tot, s_r0, s_J, s_cap, s_act, s_first = (sa(2, 2) for _ in range(6))
    s_TL = sa(8, 4)
    s_myJ, s_myr0, s_tb = sa(), sa(), sa()
    s_rho, s_sum, s_mbeg, s_mend, s_abeg = sa(), sa(), sa(), sa(), sa()
    s_pcnt, s_sinc, s_pleft, s_psoff = sa(), sa(), sa(), sa()
    s_cnt, s_L, s_phase, s_rbeg = sa(), sa(), sa(), sa()
    s_isfirst, s_islast, s_msk, s_t1, s_t2, s_t3 = (sa() for _ in range(6))

    va = Alloc(1, 256)
    vLane = va()
    PS = va(32, 2)
    PV = va(56, 2)
    F = va(32, 2)
    POOL = va(96, 2)
    R = POOL
    FX = POOL + 48
    XR = POOL + 64
    AF = POOL + 72
    W = POOL + 76
    YF = va(6, 2)
    cA, cY, cS = YF + 1, YF + 3, YF + 5
    SRC0, SRC1 = va(2, 2), va(2, 2)
    cD0, cD1 = SRC0 + 1, SRC1 + 1
    cX0, cX1, aA, aY, aS = (va() for _ in range(5))
    vT = va(6, 2)

    U = [PV + 8 * i for i in range(7)] + [F + 8 * i for i in range(4)]
    blk = {"S1": (U[0], U[10]), "S2": (U[1], U[2]), "S3": (U[2], U[9]), "D": (U[3], U[7]),
           "C1": (U[4], U[10]), "C2": (U[5], U[8]), "C3": (U[6], U[9]),
           "P0": (PS, U[7]), "Q1": (PS + 8, U[8]), "Q2": (PS + 16, U[9]), "Q3": (PS + 24, U[10])}

    def stamp(i):
        if opt.prof:
            e("s_memtime s[100:101]")
            e("s_waitcnt lgkmcnt(0)")
            e(f"v_writelane_b32 v254, s100, {i}")
            e("s_memrealtime s[100:101]")
            e("s_waitcnt lgkmcnt(0)")
            e(f"v_writelane_b32 v254, s100, {32 + i}")

    def stamp_flush():
        if opt.prof:
            e("s_memrealtime s[100:101]")
            e("s_waitcnt lgkmcnt(0)")
            e("v_writelane_b32 v254, s100, 31")
            e(f"s_lshl_b32 s100, s2, 4")
            e(f"s_lshl_b32 s101, {s(s_w)}, 1")
            e("s_add_u32 s100, s100, s101")
            e(f"s_add_u32 s100, s100, {s(s_rho)}")
            e("s_lshl_b32 s100, s100, 8")
            e(f"s_add_u32 s100, s100, {PROF_OFF}")
            e(f"v_lshl_add_u32 v255, {v(vLane)}, 2, s100")
            e(f"buffer_store_dword v254, v255, {s(S_WS,4)}, 0 offen")

    def pair(name, i):
        return blk[name][i // 4] + 2 * (i % 4)

    e(f".p2align 8\n.type {KB},@function\n{KB}:")
    e("s_cmp_ge_u32 s2, 256")
    e("s_cbranch_scc1 LB_end")
    if opt.prof:
        e("v_mov_b32 v254, 0")
        e("s_memrealtime s[100:101]")
        e("s_waitcnt lgkmcnt(0)")
        e("v_writelane_b32 v254, s100, 30")
    stamp(0)
    e(f"s_load_dwordx2 {s(P,2)}, s[0:1], 0")
    e(f"s_load_dwordx2 {s(P+2,2)}, s[0:1], 16")
    e(f"s_load_dwordx2 {s(P+4,2)}, s[0:1], 72")
    e(f"s_load_dwordx2 {s(P+6,2)}, s[0:1], 88")
    e(f"v_lshrrev_b32 {v(vT)}, 6, v0")
    e(f"v_and_b32 {v(vLane)}, 63, v0")
    e(f"v_readfirstlane_b32 {s(s_w)}, {v(vT)}")
    e(f"s_and_b32 {s(s_t0)}, s2, 7")
    e(f"s_lshl_b32 {s(s_t0)}, {s(s_t0)}, 5")
    e(f"s_lshr_b32 {s(s_bk0)}, s2, 3")
    e(f"s_add_u32 {s(s_bk0)}, {s(s_bk0)}, {s(s_t0)}")
    e(f"s_and_b32 {s(s_chi)}, {s(s_w)}, 1")
    e(f"s_lshr_b32 {s(s_rp)}, {s(s_w)}, 2")
    e(f"s_lshr_b32 {s(s_tile)}, {s(s_w)}, 1")
    e(f"s_xor_b32 {s(s_tile)}, {s(s_tile)}, {s(s_rp)}")
    e(f"s_lshl_b32 {s(s_mybk)}, {s(s_rp)}, 8")
    e(f"s_add_u32 {s(s_mybk)}, {s(s_mybk)}, {s(s_bk0)}")
    e(f"s_mul_i32 {s(s_tb)}, {s(s_rp)}, {TB}")
    e(f"s_mov_b64 {s(s_r0,2)}, 0")
    e(f"s_movk_i32 {s(s_cap)}, {JMAX}")
    e(f"s_movk_i32 {s(s_cap+1)}, {JMAX}")
    for r in (s_act, s_act + 1, s_first, s_first + 1):
        e(f"s_mov_b32 {s(r)}, 1")
    e(f"s_mov_b32 {s(s_msk)}, 0xffff0000")
    e(f"s_mul_i32 {s(s_rbeg)}, {s(s_w)}, {RING_W}")
    e(f"s_add_u32 {s(s_rbeg)}, {s(s_rbeg)}, {L_RING}")
    e("s_waitcnt lgkmcnt(0)")
    e.c("x as rows of 512 bytes; the base sits 1 KiB low and every access adds that back")
    e(f"s_sub_u32 {s(S_X)}, {s(P)}, 1024")
    e(f"s_subb_u32 {s(S_X+1)}, {s(P+1)}, 0")
    e(f"s_or_b32 {s(S_X+1)}, {s(S_X+1)}, 0x02000000")
    e(f"s_mov_b32 {s(S_X+2)}, {N}")
    e(f"s_mov_b32 {s(S_X+3)}, 0x00020000")
    if opt.payload:
        srd(e, S_A, P + 6, A_BYTES, APAY_OFF)
    else:
        srd(e, S_A, P + 2, A_BYTES)
    srd(e, S_WS, P + 6, WS_BYTES)
    srd(e, S_OUT, P + 4, X_BYTES)
    srd(e, S_PART, P + 6, N * 1024, PART_OFF)

    e.c("per-lane constants; consumer lane (e, h) serves slot e ^ (16*chi)")
    t0, t1, t2 = vT, vT + 1, vT + 2
    e(f"s_lshl_b32 {s(s_t0)}, {s(s_chi)}, 4")
    e(f"v_and_b32 {v(t0)}, 31, {v(vLane)}")
    e(f"v_xor_b32 {v(t0)}, {s(s_t0)}, {v(t0)}")
    e(f"v_lshrrev_b32 {v(t1)}, 5, {v(vLane)}")
    e(f"v_lshlrev_b32 {v(cY)}, 3, {v(t0)}")
    e(f"v_bfe_u32 {v(t2)}, {v(t0)}, 3, 1")
    e(f"v_xor_b32 {v(cA)}, {v(t2)}, {v(t1)}")
    e(f"v_lshlrev_b32 {v(cA)}, 4, {v(cA)}")
    e(f"v_lshl_add_u32 {v(cA)}, {v(t0)}, 5, {v(cA)}")
    e(f"v_xor_b32 {v(t2)}, {v(t2)}, {v(t1)}")
    e(f"v_lshlrev_b32 {v(t2)}, 1, {v(t2)}")
    e(f"v_and_b32 {v(cX1)}, 1, {v(t0)}")
    e(f"v_or_b32 {v(t2)}, {v(t2)}, {v(cX1)}")
    e(f"v_lshlrev_b32 {v(t2)}, 4, {v(t2)}")
    e(f"v_lshl_add_u32 {v(t2)}, {v(cX1)}, 10, {v(t2)}")
    e(f"v_lshrrev_b32 {v(cX0)}, 1, {v(t0)}")
    e(f"v_lshl_add_u32 {v(cX0)}, {v(cX0)}, 6, {v(t2)}")
    e(f"v_add_u32 {v(cX0)}, {s(s_rbeg)}, {v(cX0)}")
    e(f"v_xor_b32 {v(cX1)}, 16, {v(cX0)}")
    e(f"v_lshrrev_b32 {v(t0)}, 2, {v(vLane)}")
    e(f"v_lshlrev_b32 {v(cS)}, 4, {v(t0)}")
    e(f"v_bfe_u32 {v(t0)}, {v(vLane)}, 4, 1")
    e(f"v_lshlrev_b32 {v(t0)}, 1, {v(t0)}")
    e(f"v_and_b32 {v(t1)}, 3, {v(vLane)}")
    e(f"v_xor_b32 {v(t0)}, {v(t0)}, {v(t1)}")
    e(f"v_lshlrev_b32 {v(cD0)}, 4, {v(t0)}")
    e(f"v_xor_b32 {v(cD1)}, 16, {v(cD0)}")
    e(f"v_add_u32 {v(cD0)}, 1024, {v(cD0)}")

    pa = Alloc(PS, PS + 120)
    vRec = pa(28, 2)
    vPos = pa(7)
    vRank = pa(7)
    vU, vEnt, vCnt, vScan, vG, vOne = (pa() for _ in range(6))
    vPat = pa(4, 2)
    q = [pa() for _ in range(12)]
    q4 = pa(8, 2)

    e("LB_job:")
    e(f"v_and_b32 {v(vU)}, 255, v0")
    e(f"s_lshl_b32 {s(s_t0)}, {s(s_mybk)}, 2")
    e(f"s_add_u32 {s(s_t0)}, {s(s_t0)}, {TAB_OFF}")
    e(f"v_lshl_add_u32 {v(q[0])}, {v(vU)}, 11, {s(s_t0)}")
    e(f"v_mov_b32 {v(vEnt)}, 0")
    e(f"v_cmp_gt_u32 vcc, {NCH}, {v(vU)}")
    e("s_mov_b64 exec, vcc")
    e(f"buffer_load_dword {v(vEnt)}, {v(q[0])}, {s(S_WS,4)}, 0 offen")
    e("s_mov_b64 exec, -1")
    e.c("fill the step rows with the empty-slot pattern, clear the counters")
    for k in range(4):
        e(f"v_mov_b32 {v(vPat+k)}, {hex(PAT)}")
    e(f"v_lshlrev_b32 {v(q[0])}, 4, v0")
    e(f"v_add_u32 {v(q[0])}, {L_META0}, {v(q[0])}")
    n16 = (2 * MS + 768) // 16
    for k in range((n16 + 511) // 512):
        rem = n16 - 512 * k
        if rem < 512:
            e(f"v_cmp_gt_u32 vcc, {rem}, v0")
            e("s_mov_b64 exec, vcc")
        e(f"ds_write_b128 {v(q[0])}, {v(vPat,4)} offset:{k * 8192}")
    e("s_mov_b64 exec, -1")
    for k in range(4):
        e(f"v_mov_b32 {v(q4+k)}, 0")
    e(f"v_lshl_add_u32 {v(q[0])}, {v(vU)}, 4, {s(s_tb)}")
    e(f"v_cmp_gt_u32 vcc, 65, {v(vU)}")
    e("s_mov_b64 exec, vcc")
    e(f"ds_write_b128 {v(q[0])}, {v(q4,4)}")
    e("s_mov_b64 exec, -1")
    e(f"v_mov_b32 {v(vOne)}, 1")
    e(f"v_mul_u32_u24 {v(vG)}, {CH}, {v(vU)}")
    e("s_waitcnt vmcnt(0)")
    stamp(1)
    e(f"v_lshrrev_b32 {v(vCnt)}, 16, {v(vEnt)}")
    e(f"v_and_b32 {v(vEnt)}, 0xffff, {v(vEnt)}")
    e(f"v_add_u32 {v(vG)}, {v(vG)}, {v(vEnt)}")
    e(f"v_mov_b32 {v(vScan)}, {v(vCnt)}")
    wave_incl_scan(e, vScan)
    e(f"s_lshl_b32 {s(s_t0)}, {s(s_w)}, 2")
    e(f"v_mov_b32 {v(q[0])}, {s(s_t0)}")
    e(f"v_cmp_eq_u32 vcc, 63, {v(vLane)}")
    e("s_mov_b64 exec, vcc")
    e(f"ds_write_b32 {v(q[0])}, {v(vScan)} offset:{L_WSUM}")
    e("s_mov_b64 exec, -1")
    e(f"v_sub_u32 {v(vScan)}, {v(vScan)}, {v(vCnt)}")
    e(f"v_mov_b32 {v(q[0])}, 0")
    e("s_waitcnt lgkmcnt(0)")
    e("s_barrier")
    e(f"ds_read_b128 {v(q4,4)}, {v(q[0])} offset:{L_WSUM}")
    e(f"ds_read_b128 {v(q4+4,4)}, {v(q[0])} offset:{L_WSUM + 16}")
    e("s_waitcnt lgkmcnt(0)")
    for k in range(8):
        e(f"v_readfirstlane_b32 {s(s_TL+k)}, {v(q4+k)}")
    e("s_nop 0")
    for h in range(2):
        for k in range(1, 4):
            e(f"s_add_u32 {s(s_TL+4*h+k)}, {s(s_TL+4*h+k)}, {s(s_TL+4*h+k-1)}")
        e(f"s_mov_b32 {s(s_tot+h)}, {s(s_TL+4*h+3)}")
        e(f"s_sub_u32 {s(s_J+h)}, {s(s_tot+h)}, {s(s_r0+h)}")
        e(f"s_min_u32 {s(s_J+h)}, {s(s_J+h)}, {s(s_cap+h)}")
    e(f"s_mov_b32 {s(s_t0)}, 0")
    for w in (1, 2, 3, 5, 6, 7):
        e(f"s_cmp_eq_u32 {s(s_w)}, {w}")
        e(f"s_cselect_b32 {s(s_t0)}, {s(s_TL+w-1)}, {s(s_t0)}")
    e(f"s_cmp_eq_u32 {s(s_rp)}, 0")
    e(f"s_cselect_b32 {s(s_myJ)}, {s(s_J)}, {s(s_J+1)}")
    e(f"s_cselect_b32 {s(s_myr0)}, {s(s_r0)}, {s(s_r0+1)}")
    e(f"s_sub_u32 {s(s_t0)}, {s(s_t0)}, {s(s_myr0)}")
    e(f"v_add_u32 {v(vScan)}, {s(s_t0)}, {v(vScan)}")
    e.c("list the global positions of the job's records")
    e(f"v_sub_u32 {v(q[0])}, 0, {v(vScan)}")
    e(f"v_max_i32 {v(q[0])}, 0, {v(q[0])}")
    e(f"v_sub_u32 {v(q[1])}, {s(s_myJ)}, {v(vScan)}")
    e(f"v_min_i32 {v(q[1])}, {v(q[1])}, {v(vCnt)}")
    e(f"v_sub_u32 {v(q[1])}, {v(q[1])}, {v(q[0])}")
    e(f"v_add_u32 {v(vG)}, {v(vG)}, {v(q[0])}")
    e(f"v_add_u32 {v(q[0])}, {v(q[0])}, {v(vScan)}")
    e(f"s_mul_i32 {s(s_t1)}, {s(s_rp)}, {JMAX * 4}")
    e(f"s_add_u32 {s(s_t1)}, {s(s_t1)}, {L_POS}")
    e(f"v_lshl_add_u32 {v(q[0])}, {v(q[0])}, 2, {s(s_t1)}")
    e("LB_pl:")
    e(f"v_cmp_lt_i32 vcc, 0, {v(q[1])}")
    e("s_and_b64 exec, exec, vcc")
    e("s_cbranch_execz LB_pl_done")
    e(f"ds_write_b32 {v(q[0])}, {v(vG)}")
    e(f"v_add_u32 {v(q[0])}, 4, {v(q[0])}")
    e(f"v_add_u32 {v(vG)}, 1, {v(vG)}")
    e(f"v_subrev_u32 {v(q[1])}, 1, {v(q[1])}")
    e("s_branch LB_pl")
    e("LB_pl_done:")
    e("s_mov_b64 exec, -1")
    e(f"v_lshl_add_u32 {v(q[0])}, {v(vU)}, 2, {s(s_t1)}")
    for k in range(7):
        e(f"v_add_u32 {v(q[1])}, {256 * k}, {v(vU)}")
        e(f"v_cmp_gt_u32 {s(s_m+2*k,2)}, {s(s_myJ)}, {v(q[1])}")
    e(f"v_mov_b32 {v(q[2])}, 0xffffff00")
    e(f"s_mov_b32 {s(s_t0)}, {REC_OFF}")
    e("s_waitcnt lgkmcnt(0)")
    e("s_barrier")
    stamp(2)
    for k in range(7):
        e(f"ds_read_b32 {v(vPos+k)}, {v(q[0])} offset:{1024 * k}")
    for k in range(7):
        e(f"s_waitcnt lgkmcnt({6-k})")
        e(f"v_mad_u32_u24 {v(q[3+k])}, {v(vPos+k)}, 12, {s(s_t0)}")
        e(f"v_cndmask_b32 {v(q[3+k])}, {v(q[2])}, {v(q[3+k])}, {s(s_m+2*k,2)}")
        e(f"buffer_load_dwordx3 {v(vRec+4*k,3)}, {v(q[3+k])}, {s(S_WS,4)}, 0 offen")
    e.c("rank of every record inside its node")
    for k in range(7):
        e(f"s_waitcnt vmcnt({6-k})")
        e(f"v_lshrrev_b32 {v(vRec+4*k+3)}, 20, {v(vRec+4*k+2)}")
        e(f"v_lshl_add_u32 {v(vRec+4*k+3)}, {v(vRec+4*k+3)}, 2, {s(s_tb)}")
        e(f"s_mov_b64 exec, {s(s_m+2*k,2)}")
        e(f"ds_add_rtn_u32 {v(vRank+k)}, {v(vRec+4*k+3)}, {v(vOne)} offset:{T_CNT}")
        e("s_mov_b64 exec, -1")
    e("s_waitcnt lgkmcnt(0)")
    e("s_barrier")

    stamp(3)
    e.c("waves 0 and 4: order the nodes by degree, split the largest, lay out the tiles")
    e(f"s_and_b32 {s(s_t0)}, {s(s_w)}, 3")
    e(f"s_cmp_lg_u32 {s(s_t0)}, 0")
    e("s_cbranch_scc1 LB_nosort")
    d0, d1, k0, k1, o0, o1, ad, hv, hs, ln, jj, sp = q
    e(f"v_lshl_add_u32 {v(ad)}, {v(vLane)}, 2, {s(s_tb)}")
    e(f"ds_read_b32 {v(d0)}, {v(ad)} offset:{T_CNT}")
    e(f"ds_read_b32 {v(d1)}, {v(ad)} offset:{T_CNT + 256}")
    e(f"v_cmp_gt_u32 {s(s_ex,2)}, {NPB - 64}, {v(vLane)}")
    e("s_waitcnt lgkmcnt(0)")
    for d, k in ((d0, k0), (d1, k1)):
        e(f"v_min_u32 {v(k)}, 63, {v(d)}")
        e(f"v_sub_u32 {v(k)}, 63, {v(k)}")
        e(f"v_lshlrev_b32 {v(k)}, 2, {v(k)}")
    e(f"v_add_u32 {v(hv)}, {s(s_tb)}, {v(k0)}")
    e(f"v_add_u32 {v(hs)}, {s(s_tb)}, {v(k1)}")
    e(f"ds_add_rtn_u32 {v(o0)}, {v(hv)}, {v(vOne)} offset:{T_H1}")
    e(f"s_mov_b64 exec, {s(s_ex,2)}")
    e(f"ds_add_rtn_u32 {v(o1)}, {v(hs)}, {v(vOne)} offset:{T_H1}")
    e("s_mov_b64 exec, -1")
    e(f"ds_read_b32 {v(hv)}, {v(ad)} offset:{T_H1}")
    e(f"v_lshl_or_b32 {v(d0)}, {v(d0)}, 8, {v(vLane)}")
    e(f"v_lshl_or_b32 {v(d1)}, {v(d1)}, 8, {v(vLane)}")
    e(f"v_or_b32 {v(d1)}, 64, {v(d1)}")
    e("s_waitcnt lgkmcnt(0)")
    e(f"v_mov_b32 {v(hs)}, {v(hv)}")
    wave_incl_scan(e, hs)
    e(f"v_sub_u32 {v(hs)}, {v(hs)}, {v(hv)}")
    e(f"ds_bpermute_b32 {v(k0)}, {v(k0)}, {v(hs)}")
    e(f"ds_bpermute_b32 {v(k1)}, {v(k1)}, {v(hs)}")
    e(f"v_cmp_gt_u32 vcc, {NSPLIT}, {v(vLane)}")
    e(f"v_lshlrev_b32 {v(jj)}, 1, {v(vLane)}")
    e(f"v_subrev_u32 {v(jj)}, {NSPLIT}, {v(jj)}")
    e(f"v_cndmask_b32 {v(jj)}, {v(jj)}, {v(vLane)}, vcc")
    e(f"v_cndmask_b32 {v(sp)}, 0, {v(vOne)}, vcc")
    e(f"v_lshl_add_u32 {v(jj)}, {v(jj)}, 2, {s(s_tb)}")
    e(f"v_add_u32 {v(jj)}, {T_SORT}, {v(jj)}")
    e("s_waitcnt lgkmcnt(0)")
    e(f"v_add_u32 {v(k0)}, {v(k0)}, {v(o0)}")
    e(f"v_add_u32 {v(k1)}, {v(k1)}, {v(o1)}")
    e(f"v_lshl_add_u32 {v(k0)}, {v(k0)}, 2, {s(s_tb)}")
    e(f"v_lshl_add_u32 {v(k1)}, {v(k1)}, 2, {s(s_tb)}")
    e(f"ds_write_b32 {v(k0)}, {v(d0)} offset:{T_SORT}")
    e(f"s_mov_b64 exec, {s(s_ex,2)}")
    e(f"ds_write_b32 {v(k1)}, {v(d1)} offset:{T_SORT}")
    e("s_mov_b64 exec, -1")
    e(f"ds_read2_b32 {v(q4,2)}, {v(jj)} offset0:0 offset1:1")
    e("s_waitcnt lgkmcnt(0)")
    e(f"v_lshrrev_b32 {v(d0)}, 8, {v(q4)}")
    e(f"v_lshrrev_b32 {v(d1)}, 8, {v(q4+1)}")
    e(f"v_max_u32 {v(ln)}, {v(d0)}, {v(d1)}")
    e(f"v_add_u32 {v(d0)}, 1, {v(d0)}")
    e(f"v_lshrrev_b32 {v(d0)}, 1, {v(d0)}")
    e(f"v_cndmask_b32 {v(ln)}, {v(ln)}, {v(d0)}, vcc")
    e(f"v_min_u32 {v(k0)}, 63, {v(ln)}")
    e(f"v_sub_u32 {v(k0)}, 63, {v(k0)}")
    e(f"v_lshlrev_b32 {v(k0)}, 2, {v(k0)}")
    e(f"v_add_u32 {v(hv)}, {s(s_tb)}, {v(k0)}")
    e(f"ds_add_rtn_u32 {v(o0)}, {v(hv)}, {v(vOne)} offset:{T_H2}")
    e(f"ds_read_b32 {v(hv)}, {v(ad)} offset:{T_H2}")
    e(f"v_and_b32 {v(q4)}, 0xff, {v(q4)}")
    e(f"v_and_b32 {v(q4+1)}, 0xff, {v(q4+1)}")
    e("s_waitcnt lgkmcnt(0)")
    e(f"v_mov_b32 {v(hs)}, {v(hv)}")
    wave_incl_scan(e, hs)
    e(f"v_sub_u32 {v(hs)}, {v(hs)}, {v(hv)}")
    e(f"ds_bpermute_b32 {v(k0)}, {v(k0)}, {v(hs)}")
    e("s_waitcnt lgkmcnt(0)")
    e(f"v_add_u32 {v(k0)}, {v(k0)}, {v(o0)}")
    e(f"v_lshrrev_b32 {v(k1)}, 4, {v(k0)}")
    e(f"v_lshl_add_u32 {v(hv)}, {v(k1)}, 2, {s(s_tb)}")
    e(f"v_max_u32 {v(ln)}, 1, {v(ln)}")
    e(f"ds_max_u32 {v(hv)}, {v(ln)} offset:{T_TL}")
    e(f"v_mov_b32 {v(hs)}, {s(s_tb)}")
    e(f"ds_read_b128 {v(q4+4,4)}, {v(hs)} offset:{T_TL}")
    e.c("slot table: byte offset of the output row, or the mark of a second half")
    e(f"s_mul_i32 {s(s_t0)}, {s(s_mybk)}, {NPB}")
    e(f"v_add_u32 {v(q4+2)}, {s(s_t0)}, {v(q4)}")
    e(f"v_add_u32 {v(q4+3)}, {s(s_t0)}, {v(q4+1)}")
    e(f"v_lshlrev_b32 {v(q4+2)}, 9, {v(q4+2)}")
    e(f"v_lshlrev_b32 {v(q4+3)}, 9, {v(q4+3)}")
    e(f"v_mov_b32 {v(d1)}, {hex(SPLITMARK)}")
    e(f"v_cndmask_b32 {v(q4+3)}, {v(q4+3)}, {v(d1)}, vcc")
    e(f"s_lshl_b32 {s(s_t0)}, {s(s_rp)}, 9")
    e(f"s_add_u32 {s(s_t0)}, {s(s_t0)}, {L_SLOTN}")
    e(f"v_lshl_add_u32 {v(hv)}, {v(k0)}, 3, {s(s_t0)}")
    e(f"ds_write_b64 {v(hv)}, {v(q4+2,2)}")
    e("s_waitcnt lgkmcnt(1)")
    e(f"v_mov_b32 {v(o1)}, 0")
    for t in range(3):
        e(f"v_cmp_lt_u32 {s(s_ex,2)}, {t}, {v(k1)}")
        e(f"v_add_u32 {v(d0)}, {v(o1)}, {v(q4+4+t)}")
        e("s_nop 0")
        e(f"v_cndmask_b32 {v(o1)}, {v(o1)}, {v(d0)}, {s(s_ex,2)}")
    e(f"v_and_b32 {v(k0)}, 15, {v(k0)}")
    e(f"v_lshlrev_b32 {v(k0)}, 1, {v(k0)}")
    e(f"v_lshl_add_u32 {v(k0)}, {v(o1)}, 5, {v(k0)}")
    e(f"v_lshl_or_b32 {v(d0)}, {v(sp)}, 16, {v(k0)}")
    e(f"v_add_u32 {v(d1)}, 1, {v(k0)}")
    e(f"v_lshl_add_u32 {v(q4)}, {v(q4)}, 2, {s(s_tb)}")
    e(f"v_lshl_add_u32 {v(q4+1)}, {v(q4+1)}, 2, {s(s_tb)}")
    e(f"ds_write_b32 {v(q4)}, {v(d0)} offset:{T_INFO}")
    e("s_not_b64 exec, vcc")
    e(f"ds_write_b32 {v(q4+1)}, {v(d1)} offset:{T_INFO}")
    e("s_mov_b64 exec, -1")
    e("s_waitcnt lgkmcnt(0)")
    e("LB_nosort:")
    e("s_barrier")
    stamp(4)
    e(f"v_mov_b32 {v(q[0])}, 0")
    e(f"ds_read_b128 {v(q4,4)}, {v(q[0])} offset:{T_TL}")
    e(f"ds_read_b128 {v(q4+4,4)}, {v(q[0])} offset:{TB + T_TL}")
    for k in range(7):
        e(f"ds_read_b32 {v(q[3+k])}, {v(vRec+4*k+3)} offset:{T_INFO}")
    e("s_waitcnt lgkmcnt(7)")
    for k in range(8):
        e(f"v_readfirstlane_b32 {s(s_TL+k)}, {v(q4+k)}")
    e("s_nop 0")
    e.c("s_TL holds running sums of the tile lengths; a job that does not fit is halved")
    e(f"s_mov_b32 {s(s_t1)}, 0")
    for h in range(2):
        for k in range(1, 4):
            e(f"s_add_u32 {s(s_TL+4*h+k)}, {s(s_TL+4*h+k)}, {s(s_TL+4*h+k-1)}")
        e(f"s_add_u32 {s(s_t0)}, {s(s_J+h)}, 1")
        e(f"s_lshr_b32 {s(s_t0)}, {s(s_t0)}, 1")
        e(f"s_cmp_gt_u32 {s(s_TL+4*h+3)}, {SC}")
        e(f"s_cselect_b32 {s(s_cap+h)}, {s(s_t0)}, {s(s_cap+h)}")
        e(f"s_cselect_b32 {s(s_t1)}, 1, {s(s_t1)}")
    e(f"s_cmp_lg_u32 {s(s_t1)}, 0")
    e("s_cbranch_scc1 LB_again")
    e(f"s_mul_i32 {s(s_t0)}, {s(s_rp)}, {MS}")
    e(f"s_add_u32 {s(s_t0)}, {s(s_t0)}, {L_META0}")
    e(f"s_add_u32 {s(s_t1)}, {s(s_t0)}, {SC * 256}")
    for k in range(7):
        inf, rk = q[3 + k], vRank + k
        if k == 0:
            e("s_waitcnt lgkmcnt(0)")
        e(f"v_lshrrev_b32 {v(q[0])}, 16, {v(inf)}")
        e(f"v_and_b32 {v(inf)}, 0xffff, {v(inf)}")
        e(f"v_and_b32 {v(q[1])}, {v(q[0])}, {v(rk)}")
        e(f"v_lshrrev_b32 {v(rk)}, {v(q[0])}, {v(rk)}")
        e(f"v_lshlrev_b32 {v(rk)}, 5, {v(rk)}")
        e(f"v_add3_u32 {v(inf)}, {v(inf)}, {v(rk)}, {v(q[1])}")
        e(f"v_lshl_add_u32 {v(rk)}, {v(inf)}, 3, {s(s_t0)}")
        e(f"v_lshl_add_u32 {v(inf)}, {v(inf)}, 2, {s(s_t1)}")
        if opt.payload:
            e(f"v_lshlrev_b32 {v(vPos+k)}, 5, {v(vPos+k)}")
        else:
            e(f"v_and_b32 {v(vPos+k)}, 0xfffff, {v(vRec+4*k+2)}")
            e(f"v_lshlrev_b32 {v(vPos+k)}, 5, {v(vPos+k)}")
        e(f"s_mov_b64 exec, {s(s_m+2*k,2)}")
        e(f"ds_write_b64 {v(rk)}, {v(vRec+4*k,2)}")
        e(f"ds_write_b32 {v(inf)}, {v(vPos+k)}")
        e("s_mov_b64 exec, -1")
    e(f"s_mov_b32 {s(s_rho)}, 0")
    e("s_waitcnt lgkmcnt(0)")
    e("s_barrier")

    e("LB_round:")
    stamp(5)
    e(f"s_cmp_eq_u32 {s(s_rho)}, 0")
    e(f"s_cselect_b32 {s(s_t0)}, {s(s_act)}, {s(s_act+1)}")
    e(f"s_cselect_b32 {s(s_isfirst)}, {s(s_first)}, {s(s_first+1)}")
    e(f"s_cselect_b32 {s(s_t1)}, {s(s_r0)}, {s(s_r0+1)}")
    e(f"s_cselect_b32 {s(s_t2)}, {s(s_J)}, {s(s_J+1)}")
    e(f"s_cselect_b32 {s(s_t3)}, {s(s_tot)}, {s(s_tot+1)}")
    e(f"s_cselect_b64 {s(P,2)}, {s(s_TL,2)}, {s(s_TL+4,2)}")
    e(f"s_cselect_b64 {s(P+2,2)}, {s(s_TL+2,2)}, {s(s_TL+6,2)}")
    e(f"s_cmp_eq_u32 {s(s_t0)}, 0")
    e("s_cbranch_scc1 LB_round_end")
    e(f"s_add_u32 {s(s_t1)}, {s(s_t1)}, {s(s_t2)}")
    e(f"s_cmp_eq_u32 {s(s_t1)}, {s(s_t3)}")
    e(f"s_cselect_b32 {s(s_islast)}, 1, 0")
    e(f"s_mov_b32 {s(s_sum)}, {s(P+3)}")
    e(f"s_mov_b32 {s(s_t0)}, 0")
    e(f"s_mov_b32 {s(s_t1)}, {s(P)}")
    for t in range(1, 4):
        e(f"s_cmp_eq_u32 {s(s_tile)}, {t}")
        e(f"s_cselect_b32 {s(s_t0)}, {s(P+t-1)}, {s(s_t0)}")
        e(f"s_cselect_b32 {s(s_t1)}, {s(P+t)}, {s(s_t1)}")
    e(f"s_mul_i32 {s(s_t2)}, {s(s_rho)}, {MS}")
    e(f"s_add_u32 {s(s_t2)}, {s(s_t2)}, {L_META0}")
    e(f"s_sub_u32 {s(s_L)}, {s(s_t1)}, {s(s_t0)}")
    e(f"s_lshl_b32 {s(s_abeg)}, {s(s_t0)}, 10")
    e(f"s_add_u32 {s(s_abeg)}, {s(s_abeg)}, {L_A}")
    e(f"s_lshl_b32 {s(s_t0)}, {s(s_t0)}, 8")
    e(f"s_lshl_b32 {s(s_t1)}, {s(s_t1)}, 8")
    e(f"s_add_u32 {s(s_mbeg)}, {s(s_t2)}, {s(s_t0)}")
    e(f"s_add_u32 {s(s_mend)}, {s(s_t2)}, {s(s_t1)}")
    e.c("gather the edge attributes into step-major rows")
    e(f"s_lshl_b32 {s(s_t0)}, {s(s_w)}, 7")
    e(f"s_add_u32 {s(s_t0)}, {s(s_t0)}, {s(s_t2)}")
    e(f"s_add_u32 {s(s_t0)}, {s(s_t0)}, {SC * 256}")
    e(f"v_lshrrev_b32 {v(t0)}, 1, {v(vLane)}")
    e(f"v_lshl_add_u32 {v(t0)}, {v(t0)}, 2, {s(s_t0)}")
    for k in range(8):
        e(f"ds_read_b32 {v(R+k)}, {v(t0)} offset:{1024 * k}")
    e(f"v_bfe_u32 {v(t1)}, {v(vLane)}, 4, 1")
    e(f"v_xor_b32 {v(t1)}, {v(t1)}, {v(vLane)}")
    e(f"v_and_b32 {v(t1)}, 1, {v(t1)}")
    e(f"v_lshlrev_b32 {v(t1)}, 4, {v(t1)}")
    e(f"s_lshl_b32 {s(s_t0)}, {s(s_chi)}, 10")
    e(f"s_add_u32 {s(s_t0)}, {s(s_t0)}, {WRAD_OFF}")
    e(f"v_lshl_add_u32 {v(t2)}, {v(vLane)}, 4, {s(s_t0)}")
    for p in range(5):
        e(f"buffer_load_dwordx4 {v(W+4*p,4)}, {v(t2)}, {s(S_WS,4)}, 0 offen" + (" offset:2048" if p & 1 else ""))
        if p & 1:
            e(f"v_add_u32 {v(t2)}, 4096, {v(t2)}")
    e(f"s_mov_b32 {s(s_t0)}, {s(s_w)}")
    e("s_waitcnt lgkmcnt(0)")
    ant = " nt" if opt.b_nt_a else ""
    for k in range(8):
        e(f"s_cmp_ge_u32 {s(s_t0)}, {s(s_sum)}")
        e("s_cbranch_scc1 LB_adone")
        e(f"s_lshl_b32 {s(s_t1)}, {s(s_t0)}, 10")
        e(f"s_add_u32 m0, {s(s_t1)}, {L_A}")
        e(f"v_add_u32 {v(R+k)}, {v(R+k)}, {v(t1)}")
        e(f"buffer_load_dwordx4 {v(R+k)}, {s(S_A,4)}, 0 offen{ant} lds")
        e(f"s_add_u32 {s(s_t0)}, {s(s_t0)}, 8")
    e("LB_adone:")

    wraps = []

    def adv(ph):
        a, b = e.label("wrap"), e.label("back")
        wraps.append((a, b, ph))
        return [f"s_sub_u32 {s(s_pcnt)}, {s(s_pcnt)}, 1", f"s_cbranch_scc1 {a}", f"{b}:"]

    def src_read(ph):
        return [f"ds_read_u16 {v(SRC0)}, {v(aS)} offset:{ph * 256 + 6}",
                f"ds_read_u16 {v(SRC1)}, {v(aS)} offset:{ph * 256 + 14}"]

    def dma(ph):
        return [f"s_add_u32 m0, {s(s_rbeg)}, {ph * 2048}",
                None,
                f"buffer_load_dwordx4 {v(SRC0,2)}, {s(S_X,4)}, {s(s_psoff)} idxen offen lds",
                f"buffer_load_dwordx4 {v(SRC1,2)}, {s(S_X,4)}, {s(s_psoff)} idxen offen offset:1024 lds"]

    def x_read(slot):
        return [f"ds_read_b128 {v(XR,4)}, {v(cX0)} offset:{slot * 2048}",
                f"ds_read_b128 {v(XR+4,4)}, {v(cX1)} offset:{slot * 2048}"]

    def emit(lst):
        for ln_ in lst:
            e(ln_ if ln_ else "s_nop 0")

    def pass_setup():
        e(f"s_lshl_b32 {s(s_t0)}, {s(s_phase)}, 10")
        e(f"s_sub_u32 {s(s_t0)}, {s(s_abeg)}, {s(s_t0)}")
        e(f"s_lshl_b32 {s(s_t1)}, {s(s_phase)}, 8")
        e(f"s_sub_u32 {s(s_t1)}, {s(s_mbeg)}, {s(s_t1)}")
        e(f"v_add_u32 {v(aA)}, {s(s_abeg)}, {v(cA)}")
        e(f"v_add_u32 {v(aY)}, {s(s_t1)}, {v(cY)}")
        e(f"ds_read_b128 {v(AF,4)}, {v(aA)}")
        e(f"v_add_u32 {v(aA)}, {s(s_t0)}, {v(cA)}")
        e(f"s_sub_u32 {s(s_cnt)}, {s(s_L)}, 1")

    e.c("prime the x ring: three steps in flight; the source row of step g is read in sub-step (g + 2) mod 3")
    e(f"s_sub_u32 {s(s_pcnt)}, {s(s_L)}, 1")
    e(f"s_movk_i32 {s(s_sinc)}, 768")
    e(f"s_mov_b32 {s(s_pleft)}, 4")
    e(f"s_xor_b32 {s(s_psoff)}, {s(s_rho)}, 1")
    e(f"s_lshl_b32 {s(s_psoff)}, {s(s_psoff)}, 1")
    e(f"s_or_b32 {s(s_psoff)}, {s(s_psoff)}, {s(s_chi)}")
    e(f"s_lshl_b32 {s(s_psoff)}, {s(s_psoff)}, 6")
    e(f"s_sub_u32 {s(s_t0)}, {s(s_mbeg)}, 512")
    e(f"v_add_u32 {v(aS)}, {s(s_t0)}, {v(cS)}")
    emit(src_read(2))
    e(f"v_add_u32 {v(aS)}, {s(s_sinc)}, {v(aS)}")
    for g in range(3):
        e("s_waitcnt lgkmcnt(0)")
        emit(dma(g) + adv(g) + src_read(g))
    e(f"v_add_u32 {v(aS)}, {s(s_sinc)}, {v(aS)}")
    e(f"s_mov_b32 {s(s_phase)}, 0")
    stamp(6)
    e("s_waitcnt vmcnt(4)")
    e("s_barrier")
    stamp(7)
    emit(x_read(0))
    pass_setup()

    def ysel(j, neg, fma):
        reg = YF + 2 * ((j - 1) // 2)
        hi = (j - 1) & 1
        if opt.ysep:
            reg, hi = YF + 2 * (j - 1), 0
        if fma:
            m = f" op_sel:[0,{hi},0] op_sel_hi:[1,{hi},1]"
            if neg:
                m += " neg_lo:[0,1,0] neg_hi:[0,1,0]"
        return v(reg, 2), m

    def pk_acc(name, a, b):
        return [f"v_pk_fma_f32 {v(pair(name,i),2)}, {v(a+2*i,2)}, {v(b+2*i,2)}, {v(pair(name,i),2)}" for i in range(8)]

    def pk_mul(r):
        return [f"v_pk_mul_f32 {v(r+2*i,2)}, {v(FX+2*i,2)}, {v(r+2*i,2)}" for i in range(8)]

    def pk_accy(name, a, j, neg=False):
        y, m = ysel(j, neg, True)
        return [f"v_pk_fma_f32 {v(pair(name,i),2)}, {v(a+2*i,2)}, {y}, {v(pair(name,i),2)}{m}" for i in range(8)]

    def one_pass(m):
        R0, R1, R2 = R, R + 16, R + 32
        if m == 0:
            paths = [0, 2]
            zero = ["P0", "Q1", "Q2", "Q3"]
            done = zero
            pks = pk_acc("P0", FX, R0) + pk_mul(R1) + pk_accy("Q1", R1, 1) + pk_accy("Q2", R1, 2) + pk_accy("Q3", R1, 3)
        else:
            paths = [3, 1, 4]
            zero = {1: ["S1", "D", "C2", "C3"], 2: ["S2", "C1"], 3: ["S3"]}[m]
            done = {1: ["S1"], 2: ["S2", "C3"], 3: ["S3", "D", "C1", "C2"]}[m]
            nx, pv = m % 3 + 1, (m + 1) % 3 + 1
            pks = (pk_acc(f"S{m}", FX, R0) + pk_mul(R1) + pk_accy("D", R1, m) + pk_mul(R2)
                   + pk_accy(f"C{nx}", R2, pv) + pk_accy(f"C{pv}", R2, nx, True))
        e.c(f"pass over component {m}")
        stamp(8 + 2 * m)
        for b in zero:
            for i in range(8):
                e(f"v_mov_b64 {v(pair(b,i),2)}, 0")
        ent = [e.label(f"pass{m}_{ph}") for ph in range(3)]
        ext = [e.label(f"exit{m}_{ph}") for ph in range(2)]
        fin = e.label(f"fin{m}")
        for ph in (1, 2):
            e(f"s_cmp_eq_u32 {s(s_phase)}, {ph}")
            e(f"s_cbranch_scc1 {ent[ph]}")
        for ph in range(3):
            e(f"{ent[ph]}:")
            e("s_waitcnt lgkmcnt(0)")
            fill = []
            for i in range(8):
                fill.append(f"v_lshlrev_b32 {v(FX+2*i)}, 16, {v(XR+i)}")
                fill.append(f"v_and_b32 {v(FX+2*i+1)}, {s(s_msk)}, {v(XR+i)}")
            cuts = [0, 6, 12] if m else [0, 6]
            if opt.prio:
                e("s_setprio 1")
            for i, ln_ in enumerate(fill):
                if i in cuts:
                    k = cuts.index(i)
                    if not opt.dbg & 4:
                        e(f"v_mfma_f32_32x32x16_bf16 {v(R+16*k,16)}, {v(W+4*paths[k],4)}, {v(AF,4)}, 0")
                e(ln_)
            body = list(pks)
            nsing = opt.sing_s if m == 0 else opt.sing_v
            for i in range(nsing):
                body.pop(0)
                d_ = pair("P0" if m == 0 else f"S{m}", i)
                for k in range(2):
                    e(f"v_fmac_f32 {v(d_+k)}, {v(FX+2*i+k)}, {v(R0+2*i+k)}")
            if opt.prio:
                e("s_setprio 0")
            d = dma(ph)
            ys = [f"ds_read_u16_d16_hi {v(YF+2*j)}, {v(aY)} offset:{ph * 256 + 2 * j}" for j in range(3)]
            emit(ys[:2] + d[:1] + ys[2:] + [f"ds_read_b128 {v(AF,4)}, {v(aA)} offset:{(ph + 1) * 1024}"])
            side = ([] if opt.dbg & 1 else d[2:]) + adv(ph) + src_read(ph)
            if opt.dbg & 2:
                body = ['s_nop 0'] * len(body)
            if opt.dbg & 8:
                body = [b_ if i_ % 2 else 's_nop 0' for i_, b_ in enumerate(body)]
            ny = 16 - nsing
            emit(body[:opt.dma_at])
            emit(side)
            emit(body[opt.dma_at:ny])
            e("s_waitcnt lgkmcnt(3)")
            cut = len(body) - opt.x_tail
            emit(body[ny:cut])
            e("s_waitcnt vmcnt(4)")
            emit(x_read((ph + 1) % 3))
            if ph == 2:
                e(f"v_add_u32 {v(aA)}, 3072, {v(aA)}")
                e(f"v_add_u32 {v(aY)}, 768, {v(aY)}")
                e(f"v_add_u32 {v(aS)}, {s(s_sinc)}, {v(aS)}")
            emit(body[cut:])
            e(f"s_sub_u32 {s(s_cnt)}, {s(s_cnt)}, 1")
            e(f"s_cbranch_scc1 {ext[ph]}" if ph < 2 else f"s_cbranch_scc0 {ent[0]}")
        e(f"s_mov_b32 {s(s_phase)}, 0")
        e(f"s_branch {fin}")
        e(f"{ext[0]}:")
        e(f"s_mov_b32 {s(s_phase)}, 1")
        e(f"s_branch {fin}")
        e(f"{ext[1]}:")
        e(f"s_mov_b32 {s(s_phase)}, 2")
        e(f"{fin}:")
        pass_setup()
        for b in done:
            for i in range(8):
                p_ = pair(b, i)
                e(f"v_cvt_pk_bf16_f32 {v(blk[b][0]+i)}, {v(p_)}, {v(p_+1)}")
        stamp(9 + 2 * m)

    e(f"s_cmp_eq_u32 {s(s_rho)}, 0")
    e("s_cbranch_scc1 LB_vec")
    e("LB_scal:")
    one_pass(0)
    e(f"s_cmp_eq_u32 {s(s_rho)}, 0")
    e("s_cbranch_scc1 LB_epi")
    e("s_barrier")
    e("LB_vec:")
    one_pass(1)
    e("s_barrier")
    one_pass(2)
    e("s_barrier")
    one_pass(3)
    e(f"s_cmp_lg_u32 {s(s_rho)}, 0")
    e("s_cbranch_scc1 LB_epi")
    e("s_barrier")
    e("s_branch LB_scal")

    e("LB_epi:")
    CHN = [POOL, POOL + 40]
    X1 = [CHN[0] + 24, CHN[0] + 28, CHN[0] + 32, CHN[0] + 36, CHN[1] + 24, CHN[1] + 28, CHN[1] + 32, CHN[1] + 36]
    X2 = [F + 4 * i for i in range(8)] + [POOL + 80 + 4 * i for i in range(4)]
    WF = X1 + X2
    e("s_waitcnt lgkmcnt(0)")
    e(f"s_mul_i32 {s(s_t0)}, {s(s_chi)}, 20480")
    e(f"s_add_u32 {s(s_t0)}, {s(s_t0)}, {WSI_OFF}")
    e(f"v_lshl_add_u32 {v(t0)}, {v(vLane)}, 4, {s(s_t0)}")
    for f in range(20):
        e(f"buffer_load_dwordx4 {v(WF[f],4)}, {v(t0)}, {s(S_WS,4)}, 0 offen offset:{(f % 4) * 1024}")
        if f % 4 == 3 and f < 19:
            e(f"v_add_u32 {v(t0)}, 4096, {v(t0)}")
    e(f"s_lshl_b32 {s(s_t0)}, {s(s_w)}, 14")
    e(f"v_lshl_add_u32 {v(t1)}, {v(vLane)}, 4, {s(s_t0)}")
    e(f"v_xor_b32 {v(t2)}, 0x4000, {v(t1)}")
    e("s_waitcnt vmcnt(12)")
    e("s_barrier")
    stamp(16)
    terms = [[("P0", 0), ("D", 1)]] + [[(f"Q{j}", 2), (f"S{j}", 3), (f"C{j}", 4)] for j in (1, 2, 3)]

    def chain(b, par):
        d = CHN[par] + 8 * b
        first = True
        for name, mu in terms[b]:
            for t in range(2):
                c = "0" if first else v(d, 16)
                e(f"v_mfma_f32_32x32x16_bf16 {v(d,16)}, {v(blk[name][0]+4*t,4)}, {v(WF[mu*4+t*2+par],4)}, {c}")
                first = False

    def send(b, par):
        d = CHN[par] + 8 * b + 8
        for i in range(2):
            e(f"ds_write_b128 {v(t1)}, {v(d+4*i,4)} offset:{((b * 2 + par) * 2 + i) * 1024}")

    chain(0, 0)
    chain(0, 1)
    e("s_nop 7")
    send(0, 0)
    e("s_waitcnt vmcnt(0)")
    for b in (1, 2, 3):
        chain(b, 0)
        e("s_nop 5")
        send(b - 1, 1)
        chain(b, 1)
        e("s_nop 5")
        send(b, 0)
    e("s_nop 9")
    send(3, 1)
    GET = PS
    NODE = PS + 64
    e(f"s_lshl_b32 {s(s_t0)}, {s(s_rho)}, 9")
    e(f"s_lshl_b32 {s(s_t1)}, {s(s_tile)}, 7")
    e(f"s_add_u32 {s(s_t0)}, {s(s_t0)}, {s(s_t1)}")
    e(f"s_lshl_b32 {s(s_t1)}, {s(s_chi)}, 6")
    e(f"s_add_u32 {s(s_t0)}, {s(s_t0)}, {s(s_t1)}")
    e(f"s_add_u32 {s(s_t0)}, {s(s_t0)}, {L_SLOTN}")
    e(f"v_lshrrev_b32 {v(t0)}, 5, {v(vLane)}")
    e(f"v_lshl_add_u32 {v(t0)}, {v(t0)}, 4, {s(s_t0)}")
    e(f"ds_read_b128 {v(NODE,4)}, {v(t0)}")
    e(f"ds_read_b128 {v(NODE+4,4)}, {v(t0)} offset:32")
    e("s_waitcnt lgkmcnt(0)")
    stamp(17)
    e("s_barrier")
    for i in range(16):
        e(f"ds_read_b128 {v(GET+4*i,4)}, {v(t2)} offset:{i * 1024}")
        if i == 7:
            e(f"v_mov_b32 {v(t0)}, {hex(SPLITMARK)}")
            for k in range(4):
                e(f"v_cmp_eq_u32 {s(s_m+2*k,2)}, {v(NODE+2*k+1)}, {v(t0)}")
    e(f"v_and_b32 {v(t0)}, 31, {v(vLane)}")
    e(f"v_lshlrev_b32 {v(t0)}, 2, {v(t0)}")

    def K(b, par, r):
        return CHN[par] + 8 * b + r

    for i in range(16):
        b, par, hf = i >> 2, (i >> 1) & 1, i & 1
        e(f"s_waitcnt lgkmcnt({15 - i})")
        for k in range(2):
            d = K(b, par, 4 * hf + 2 * k)
            e(f"v_pk_add_f32 {v(d,2)}, {v(d,2)}, {v(GET+4*i+2*k,2)}")
    e("s_barrier")
    stamp(18)
    e.c("fold the second half of a split node into the first")
    for k in range(4):
        e(f"s_mov_b64 exec, {s(s_m+2*k,2)}")
        for b in range(4):
            for par in range(2):
                e(f"v_add_f32 {v(K(b,par,2*k))}, {v(K(b,par,2*k))}, {v(K(b,par,2*k+1))}")
    e("s_mov_b64 exec, -1")
    e(f"s_and_b32 {s(s_t0)}, {s(s_isfirst)}, {s(s_islast)}")
    e(f"s_cmp_eq_u32 {s(s_t0)}, 0")
    e("s_cbranch_scc1 LB_multi")
    e("LB_gate:")
    for r in range(8):
        e(f"v_add_u32 {v(NODE+r)}, {v(NODE+r)}, {v(t0)}")
    G = GET
    ont = " nt" if opt.b_nt_out else ""
    e(f"s_mov_b32 {s(s_t0)}, 0xbfb8aa3b")
    for r in range(8):
        for par in range(2):
            e(f"v_mul_f32 {v(G+par*8+r)}, {s(s_t0)}, {v(K(0,par,r))}")
        e(f"v_cvt_pk_bf16_f32 {v(G+16+r)}, {v(K(0,0,r))}, {v(K(0,1,r))}")
        e(f"buffer_store_dword {v(G+16+r)}, {v(NODE+r)}, {s(S_OUT,4)}, 0 offen{ont}")
    for i in range(16):
        e(f"v_exp_f32 {v(G+i)}, {v(G+i)}")
    for i in range(16):
        e(f"v_add_f32 {v(G+i)}, 1.0, {v(G+i)}")
    for i in range(16):
        e(f"v_rcp_f32 {v(G+i)}, {v(G+i)}")
    for b in (1, 2, 3):
        for par in range(2):
            for k in range(4):
                d = K(b, par, 2 * k)
                e(f"v_pk_mul_f32 {v(d,2)}, {v(d,2)}, {v(G+par*8+2*k,2)}")
        for r in range(8):
            o = G + 16 + 8 * b + r
            e(f"v_cvt_pk_bf16_f32 {v(o)}, {v(K(b,0,r))}, {v(K(b,1,r))}")
            e(f"buffer_store_dword {v(o)}, {v(NODE+r)}, {s(S_OUT,4)}, 0 offen offset:{128 * b}{ont}")
    e("LB_round_end:")
    stamp(19)
    if opt.prof:
        e(f"s_sub_u32 s100, {s(s_mend)}, {s(s_mbeg)}")
        e("s_lshr_b32 s100, s100, 8")
        e("v_writelane_b32 v254, s100, 29")
    stamp_flush()
    e(f"s_add_u32 {s(s_rho)}, {s(s_rho)}, 1")
    e(f"s_cmp_eq_u32 {s(s_rho)}, 1")
    e("s_cbranch_scc1 LB_round")
    for h in range(2):
        e(f"s_add_u32 {s(s_r0+h)}, {s(s_r0+h)}, {s(s_J+h)}")
        e(f"s_mov_b32 {s(s_first+h)}, 0")
        e(f"s_cmp_lg_u32 {s(s_r0+h)}, {s(s_tot+h)}")
        e(f"s_cselect_b32 {s(s_act+h)}, 1, 0")
    e(f"s_or_b32 {s(s_t0)}, {s(s_act)}, {s(s_act+1)}")
    e(f"s_cmp_eq_u32 {s(s_t0)}, 0")
    e("s_cbranch_scc1 LB_end")
    e("LB_again:")
    e("s_waitcnt vmcnt(0) lgkmcnt(0)")
    e("s_barrier")
    e("s_branch LB_job")

    e("LB_multi:")
    e.c("bucket processed in several jobs: carry the ungated sums through the workspace")
    PO = PS + 72
    e(f"v_mov_b32 {v(t1)}, {hex(X_BYTES)}")
    for r in range(8):
        e(f"v_min_u32 {v(PO+r)}, {v(NODE+r)}, {v(t1)}")
        e(f"v_lshl_add_u32 {v(PO+r)}, {v(PO+r)}, 1, {v(t0)}")
    e(f"s_cmp_lg_u32 {s(s_isfirst)}, 0")
    e("s_cbranch_scc1 LB_multi_st")
    for b in range(4):
        for par in range(2):
            for r in range(8):
                e(f"buffer_load_dword {v(GET+par*8+r)}, {v(PO+r)}, {s(S_PART,4)}, 0 offen offset:{(b*2+par)*128} sc1")
        e("s_waitcnt vmcnt(0)")
        for par in range(2):
            for r in range(8):
                e(f"v_add_f32 {v(K(b,par,r))}, {v(K(b,par,r))}, {v(GET+par*8+r)}")
    e(f"s_cmp_lg_u32 {s(s_islast)}, 0")
    e("s_cbranch_scc1 LB_gate")
    e("LB_multi_st:")
    for b in range(4):
        for par in range(2):
            for r in range(8):
                e(f"buffer_store_dword {v(K(b,par,r))}, {v(PO+r)}, {s(S_PART,4)}, 0 offen offset:{(b*2+par)*128}")
        e("s_waitcnt vmcnt(0)")
    e("s_branch LB_round_end")

    for a, b, ph in wraps:
        e(f"{a}:")
        e(f"s_sub_u32 {s(s_pcnt)}, {s(s_L)}, 1")
        e(f"s_add_u32 {s(s_psoff)}, {s(s_psoff)}, 128")
        e(f"s_and_b32 {s(s_psoff)}, {s(s_psoff)}, 511")
        e(f"s_sub_u32 {s(s_t3)}, {s(s_mbeg)}, {ph * 256}")
        e(f"s_sub_u32 {s(s_pleft)}, {s(s_pleft)}, 1")
        e(f"s_cmp_lg_u32 {s(s_pleft)}, 0")
        e(f"s_cselect_b32 {s(s_t3)}, {s(s_t3)}, {L_INV}")
        e(f"s_cselect_b32 {s(s_sinc)}, {s(s_sinc)}, 0")
        e(f"s_cselect_b32 {s(s_pcnt)}, {s(s_pcnt)}, -1")
        e(f"v_add_u32 {v(aS)}, {s(s_t3)}, {v(cS)}")
        e(f"s_branch {b}")
    e("LB_end:")
    e("s_endpgm")
    return dict(vgpr=256 if opt.prof else va.p, sgpr=102 if opt.prof else sa.p)
```

```python
import sys, argparse, re
from asmlib import *
from common import *
import kern_a, kern_b

class Opt: pass

def build(**kw):
    o = Opt()
    d = dict(payload=1, a_nt_in=0, a_nt_out=0, b_nt_a=0, b_nt_out=0, x_tail=16, ysep=1, prof=0, prio=0, sing_s=0, sing_v=0, dma_at=0, dbg=0, rep_a=1, rep_b=1, rep_e=0)
    d.update(kw)
    o.__dict__.update(d)
    head = open("head.txt").read().rstrip("\n").split("\n")
    e = Emit()
    ra = kern_a.gen(e, o)
    rb = kern_b.gen(e, o)
    out = "\n".join(head) + "\n"
    la = f"; @launch kernel={KA} grid=(256,1,1) block=({kern_a.A_THREADS},1,1) lds={kern_a.lds_bytes(o)}\n"
    lb = f"; @launch kernel={KB} grid=(256,1,1) block=({kern_b.B_THREADS},1,1) lds={kern_b.lds_bytes(o)}\n"
    le = "; @launch kernel=empty_kernel grid=(256,1,1) block=(64,1,1) lds=0\n"
    out += la * o.rep_a + lb * o.rep_b + le * o.rep_e
    if o.rep_e:
        e(".globl empty_kernel\n.p2align 8\n.type empty_kernel,@function\nempty_kernel:\ns_endpgm")
    out += '.amdgcn_target "amdgcn-amd-amdhsa--gfx950"\n.text\n'
    out += f".globl {KA}\n.globl {KB}\n"
    out += e.text()
    out += '.section .rodata,"a"\n.p2align 6\n'
    out += descriptor(KA, ra["vgpr"], ra["sgpr"], (ra["vgpr"] + 3) // 4 * 4)
    out += ".p2align 6\n"
    out += descriptor(KB, rb["vgpr"], rb["sgpr"], (rb["vgpr"] + 3) // 4 * 4)
    if o.rep_e:
        out += ".p2align 6\n" + descriptor("empty_kernel", 8, 16, 8)
    return out, ra, rb

if __name__ == "__main__":
    path = sys.argv[1]
    kw = {k: int(v) for k, v in (a.split("=") for a in sys.argv[2:])}
    txt, ra, rb = build(**kw)
    open(path, "w").write(txt)
    print(path, ra, rb, "lines", txt.count("\n"))
```

```python
import sys, argparse, re
from asmlib import *
from common import *
import kern_a, kern_b

class Opt: pass

def build(**kw):
    o = Opt()
    d = dict(payload=1, a_nt_in=1, a_nt_out=2, b_nt_a=0, b_nt_out=1, x_tail=16, ysep=1, prof=0, prio=0, sing_s=0, sing_v=0, dma_at=0, dbg=0, rep_a=1, rep_b=1, rep_e=0, rep_r=0, pre_r=0, r_nt=0, r_arg=0, a_early=2, b2_at=12, ord3=1, defer=1, pf=1, prime_split=1, pf_at=-1, nobar=3, bins=1, slow=0, r1_late=1, peel=1, xpf=0, a_rec_early=1, aprof=0, mid_split=3, b5_early=0, a_sched=3, ws_shift=0, a_rec_wait=8)
    d.update(kw)
    o.__dict__.update(d)
    head = open("head.txt").read().rstrip("\n").split("\n")
    e = Emit()
    ra = kern_a.gen(e, o)
    rb = kern_b.gen(e, o)
    out = "\n".join(head) + "\n"
    la = f"; @launch kernel={KA} grid=(256,1,1) block=({kern_a.A_THREADS},1,1) lds={kern_a.lds_bytes(o)}\n"
    lb = f"; @launch kernel={KB} grid=(256,1,1) block=({kern_b.B_THREADS},1,1) lds={kern_b.lds_bytes(o)}\n"
    le = "; @launch kernel=empty_kernel grid=(256,1,1) block=(64,1,1) lds=0\n"
    lr = "; @launch kernel=read_kernel grid=(256,1,1) block=(1024,1,1) lds=0\n"
    out += lr * o.pre_r + la * o.rep_a + lr * o.rep_r + lb * o.rep_b + le * o.rep_e
    if o.rep_r or o.pre_r:
        e(".globl read_kernel\n.p2align 8\n.type read_kernel,@function\nread_kernel:")
        e(f"s_load_dwordx2 s[8:9], s[0:1], {o.r_arg}\ns_lshl_b32 s3, s2, 14\nv_lshl_add_u32 v1, v0, 4, s3\ns_waitcnt lgkmcnt(0)")
        srd(e, 4, 8, X_BYTES)
        for k in range(7):
            e(f"buffer_load_dwordx4 v[{4+4*k}:{7+4*k}], v1, s[4:7], 0 offen" + (" nt" if o.r_nt else ""))
            e("v_add_u32 v1, 0x400000, v1")
        e("s_waitcnt vmcnt(0)\ns_endpgm")
    if o.rep_e:
        e(".globl empty_kernel\n.p2align 8\n.type empty_kernel,@function\nempty_kernel:\ns_endpgm")
    out += '.amdgcn_target "amdgcn-amd-amdhsa--gfx950"\n.text\n'
    out += f".globl {KA}\n.globl {KB}\n"
    out += e.text()
    out += '.section .rodata,"a"\n.p2align 6\n'
    out += descriptor(KA, ra["vgpr"], ra["sgpr"], (ra["vgpr"] + 3) // 4 * 4)
    out += ".p2align 6\n"
    out += descriptor(KB, rb["vgpr"], rb["sgpr"], (rb["vgpr"] + 3) // 4 * 4)
    if o.rep_e:
        out += ".p2align 6\n" + descriptor("empty_kernel", 8, 16, 8)
    if o.rep_r or o.pre_r:
        out += ".p2align 6\n" + descriptor("read_kernel", 32, 16, 32)
    return out, ra, rb

if __name__ == "__main__":
    path = sys.argv[1]
    kw = {k: int(v) for k, v in (a.split("=") for a in sys.argv[2:])}
    txt, ra, rb = build(**kw)
    open(path, "w").write(txt)
    print(path, ra, rb, "lines", txt.count("\n"))
```

```python
from asmlib import *
from common import *

A_THREADS = 832
L_CNT = 0
L_STAGE = 2048
L_ASTAGE = L_STAGE + CH * 12


def lds_bytes(opt):
    return L_ASTAGE + (CH * 32 if opt.payload else 0)


def gen(e, opt):
    nt_in = " nt" if opt.a_nt_in else ""
    nt_out = ["", " nt", " sc1", " sc0 sc1", " sc0", " sc1 nt"][opt.a_nt_out]
    S_DST, S_SRC, S_RH, S_EA, S_WS = 4, 8, 12, 16, 20
    P = 24
    s_valid, s_w, s_t, s_t2, s_sel = 40, 42, 43, 44, 45
    def stamp(i):
        if opt.aprof:
            e("s_memrealtime s[60:61]")
            e("s_waitcnt lgkmcnt(0)")
            e(f"v_writelane_b32 v62, s60, {i}")

    e(f".p2align 8\n.type {KA},@function\n{KA}:")
    if opt.aprof:
        e("v_mov_b32 v62, 0")
    stamp(0)
    e(f"s_cmp_ge_u32 s2, {NCH + 5}")
    e("s_cbranch_scc1 LA_end")
    e(f"s_load_dwordx4 {s(P,4)}, s[0:1], 8")
    e(f"s_load_dwordx4 {s(P+4,4)}, s[0:1], 24")
    e(f"s_load_dwordx4 {s(P+8,4)}, s[0:1], 40")
    e(f"s_load_dwordx2 {s(P+12,2)}, s[0:1], 56")
    e(f"s_load_dwordx2 {s(P+14,2)}, s[0:1], 88")
    e("v_lshrrev_b32 v1, 6, v0")
    e("v_and_b32 v2, 63, v0")
    e(f"v_readfirstlane_b32 {s(s_w)}, v1")
    e("s_waitcnt lgkmcnt(0)")
    srd(e, S_WS, P + 14, WS_BYTES - opt.ws_shift, opt.ws_shift)
    e(f"s_cmp_ge_u32 s2, {NCH}")
    e("s_cbranch_scc1 LA_weights")
    srd(e, S_DST, P + 6, E * 4)
    srd(e, S_SRC, P + 4, E * 4)
    srd(e, S_RH, P + 0, E * 6)
    srd(e, S_EA, P + 2, A_BYTES)

    vD, vS, vR, vB, vK, vW2, vT, vZ = 4, 8, 12, 20, 24, 28, 32, 40
    e.c("edge loads: thread handles edges chunk*3200 + 4*tid .. +3")
    e("s_movk_i32 s46, 800")
    e(f"v_cmp_gt_u32 {s(s_valid,2)}, s46, v0")
    e(f"s_mul_i32 {s(s_t)}, s2, {CH * 4}")
    e(f"s_mul_i32 {s(s_t2)}, s2, {CH * 6}")
    e(f"v_lshl_add_u32 v3, v0, 4, {s(s_t)}")
    e("v_mul_u32_u24 v18, 24, v0")
    e(f"v_add_u32 v18, {s(s_t2)}, v18")
    plan = [(8, 0, 0, 0), (0, 3, 3, 2), (1, 3, 2, 2), (2, 2, 2, 2), (0, 4, 4, 0), (2, 3, 3, 0)][opt.a_sched]
    issued = [0]

    def stage_a(n):
        for _ in range(n):
            i = issued[0]
            issued[0] += 1
            e(f"s_add_u32 s47, {s(s_w)}, {13 * i}")
            e("s_min_u32 s47, s47, 99")
            e("s_lshl_b32 s47, s47, 10")
            e(f"s_add_u32 m0, s47, {L_ASTAGE}")
            e("v_add_u32 v41, s47, v19")
            e(f"buffer_load_dwordx4 v41, {s(S_EA,4)}, 0 offen{nt_in} lds")

    e(f"s_mov_b64 exec, {s(s_valid,2)}")
    e(f"buffer_load_dwordx4 {v(vD,4)}, v3, {s(S_DST,4)}, 0 offen{nt_in}")
    e("s_mov_b64 exec, -1")
    e.c("zero the bucket counters")
    e(f"v_mov_b32 {v(vZ)}, 0")
    e("v_lshlrev_b32 v1, 2, v0")
    e(f"s_cmp_ge_u32 {s(s_w)}, 8")
    e("s_cbranch_scc1 LA_nz")
    e(f"ds_write_b32 v1, {v(vZ)} offset:{L_CNT}")
    e("LA_nz:")
    e(f"s_mul_i32 {s(s_t)}, s2, {CH * 32}")
    e(f"v_lshl_add_u32 v19, v2, 4, {s(s_t)}")
    e("s_waitcnt lgkmcnt(0)")
    e("s_barrier")
    e(f"s_mov_b64 exec, {s(s_valid,2)}")
    e(f"buffer_load_dwordx4 {v(vS,4)}, v3, {s(S_SRC,4)}, 0 offen{nt_in}")
    e(f"buffer_load_dwordx4 {v(vR,4)}, v18, {s(S_RH,4)}, 0 offen{nt_in}")
    e(f"buffer_load_dwordx2 {v(vR+4,2)}, v18, {s(S_RH,4)}, 0 offen offset:16{nt_in}")
    e("s_mov_b64 exec, -1")
    stage_a(plan[0])
    stamp(1)
    e(f"s_mov_b32 {s(s_t)}, {DIVM}")
    e(f"s_mul_i32 {s(s_t2)}, s2, {CH}")
    e(f"v_lshl_add_u32 v3, v0, 2, {s(s_t2)}")
    e(f"v_mov_b32 {v(vZ)}, 1")
    e(f"s_mov_b64 exec, {s(s_valid,2)}")
    e(f"s_waitcnt vmcnt({3 + issued[0]})")
    stamp(2)
    for k in range(4):
        e(f"v_mul_u32_u24 {v(vB+k)}, {s(s_t)}, {v(vD+k)}")
        e(f"v_lshrrev_b32 {v(vB+k)}, 23, {v(vB+k)}")
        e(f"v_mul_u32_u24 {v(vT)}, {NPB}, {v(vB+k)}")
        e(f"v_lshlrev_b32 {v(vB+k)}, 2, {v(vB+k)}")
        e(f"ds_add_rtn_u32 {v(vK+k)}, {v(vB+k)}, {v(vZ)} offset:{L_CNT}")
        e(f"v_sub_u32 {v(vT)}, {v(vD+k)}, {v(vT)}")
        e(f"v_add_u32 {v(vW2+k)}, {k}, v3")
        e(f"v_lshl_or_b32 {v(vW2+k)}, {v(vT)}, 20, {v(vW2+k)}")
    e("s_mov_b64 exec, -1")
    stage_a(plan[1])
    e("s_waitcnt lgkmcnt(0)")
    e("s_barrier")
    stamp(3)
    e.c("wave 0: exclusive scan of the 512 counters, table row to global")
    e(f"s_cmp_lg_u32 {s(s_w)}, 0")
    e("s_cbranch_scc1 LA_noscan")
    vC, vP = 44, 52
    e("v_lshlrev_b32 v1, 5, v0")
    e(f"ds_read_b128 {v(vC,4)}, v1 offset:{L_CNT}")
    e(f"ds_read_b128 {v(vC+4,4)}, v1 offset:{L_CNT + 16}")
    e(f"s_lshl_b32 {s(s_t2)}, s2, 11")
    e(f"s_add_u32 {s(s_t2)}, {s(s_t2)}, {TAB_OFF}")
    e(f"v_add_u32 v42, {s(s_t2)}, v1")
    e("s_waitcnt lgkmcnt(0)")
    e(f"v_add3_u32 v43, {v(vC)}, {v(vC+1)}, {v(vC+2)}")
    e(f"v_add3_u32 v43, v43, {v(vC+3)}, {v(vC+4)}")
    e(f"v_add3_u32 v43, v43, {v(vC+5)}, {v(vC+6)}")
    e(f"v_add_u32 v43, v43, {v(vC+7)}")
    e(f"v_mov_b32 {v(vP)}, v43")
    wave_incl_scan(e, vP)
    e(f"v_sub_u32 {v(vP)}, {v(vP)}, v43")
    for k in range(1, 8):
        e(f"v_add_u32 {v(vP+k)}, {v(vP+k-1)}, {v(vC+k-1)}")
    e(f"ds_write_b128 v1, {v(vP,4)} offset:{L_CNT}")
    e(f"ds_write_b128 v1, {v(vP+4,4)} offset:{L_CNT + 16}")
    for k in range(8):
        e(f"v_lshl_or_b32 {v(vC+k)}, {v(vC+k)}, 16, {v(vP+k)}")
    e(f"buffer_store_dwordx4 {v(vC,4)}, v42, {s(S_WS,4)}, 0 offen")
    e(f"buffer_store_dwordx4 {v(vC+4,4)}, v42, {s(S_WS,4)}, 0 offen offset:16")
    e("s_waitcnt lgkmcnt(0)")
    e("LA_noscan:")
    e("s_barrier")
    stamp(4)
    e(f"s_mov_b64 exec, {s(s_valid,2)}")
    for k in range(4):
        e(f"ds_read_b32 {v(vT+k)}, {v(vB+k)} offset:{L_CNT}")
    e.c("pack the record words while the start offsets arrive")
    e(f"s_mov_b32 {s(s_sel)}, 0x05040100")
    e.c("wave 0 has two younger stores in flight, which only makes this count stricter")
    e(f"s_waitcnt vmcnt({issued[0]})")
    vA0, vA1 = 44, 48
    e(f"v_mov_b32 {v(vA0)}, {v(vR)}")
    e(f"v_perm_b32 {v(vA1)}, {v(vS)}, {v(vR+1)}, {s(s_sel)}")
    e(f"v_alignbit_b32 {v(vA0+1)}, {v(vR+2)}, {v(vR+1)}, 16")
    e(f"v_alignbit_b32 {v(vA1+1)}, {v(vS+1)}, {v(vR+2)}, 16")
    e(f"v_mov_b32 {v(vA0+2)}, {v(vR+3)}")
    e(f"v_perm_b32 {v(vA1+2)}, {v(vS+2)}, {v(vR+4)}, {s(s_sel)}")
    e(f"v_alignbit_b32 {v(vA0+3)}, {v(vR+5)}, {v(vR+4)}, 16")
    e(f"v_alignbit_b32 {v(vA1+3)}, {v(vS+3)}, {v(vR+5)}, 16")
    e("s_waitcnt lgkmcnt(0)")
    for k in range(4):
        e(f"v_add_u32 {v(vT+k)}, {v(vT+k)}, {v(vK+k)}")
        e(f"v_mul_u32_u24 {v(vT+k)}, 12, {v(vT+k)}")
        e(f"v_add_u32 {v(vT+k)}, {L_STAGE}, {v(vT+k)}")
        e(f"ds_write2_b32 {v(vT+k)}, {v(vA0+k)}, {v(vA1+k)} offset0:0 offset1:1")
        e(f"ds_write_b32 {v(vT+k)}, {v(vW2+k)} offset:8")
    e("s_mov_b64 exec, -1")
    stage_a(plan[2])
    e("s_waitcnt lgkmcnt(0)")
    e("s_barrier")
    stage_a(plan[3])
    if opt.a_rec_wait < 8:
        e(f"s_waitcnt vmcnt({opt.a_rec_wait})")
    assert issued[0] == 8 and opt.a_rec_early and opt.payload
    stamp(5)
    e.c("coalesced write-out of the sorted records")
    e(f"s_mov_b64 exec, {s(s_valid,2)}")
    e("v_lshlrev_b32 v1, 4, v0")
    for k in range(3):
        e(f"ds_read_b128 {v(4+4*k,4)}, v1 offset:{L_STAGE + k * 12800}")
    e(f"s_mul_i32 {s(s_t)}, s2, {CH * 12}")
    e(f"s_add_u32 {s(s_t)}, {s(s_t)}, {REC_OFF}")
    e(f"v_add_u32 v3, {s(s_t)}, v1")
    if opt.payload:
        e("v_lshrrev_b32 v16, 1, v0")
        e("v_mul_u32_u24 v16, 12, v16")
        for k in range(8):
            e(f"ds_read_b32 {v(20+k)}, v16 offset:{L_STAGE + 8 + k * 4800}")
    for k in range(3):
        e(f"s_waitcnt lgkmcnt({(8 if opt.payload else 0) + 2 - k})")
        e(f"buffer_store_dwordx4 {v(4+4*k,4)}, v3, {s(S_WS,4)}, 0 offen{nt_out}")
        if k < 2:
            e("v_add_u32 v3, 12800, v3")
    if opt.payload:
        e(f"s_mul_i32 {s(s_t)}, s2, {CH * 32}")
        e(f"s_sub_u32 {s(s_t2)}, {L_ASTAGE}, {s(s_t)}")
        e("v_and_b32 v17, 1, v0")
        e(f"v_lshl_add_u32 v17, v17, 4, {s(s_t2)}")
        e(f"s_add_u32 {s(s_t)}, {s(s_t)}, {APAY_OFF}")
        e(f"v_add_u32 v3, {s(s_t)}, v1")
        e("s_waitcnt lgkmcnt(0)")
        for k in range(8):
            e(f"v_and_b32 {v(20+k)}, 0xfffff, {v(20+k)}")
            e(f"v_lshl_add_u32 {v(20+k)}, {v(20+k)}, 5, v17")
        if opt.a_rec_early:
            stamp(6)
            e("s_waitcnt vmcnt(3)")
            e("s_barrier")
            stamp(7)
        for k in range(8):
            e(f"ds_read_b128 {v(28+4*k,4)}, {v(20+k)}")
        for k in range(8):
            e(f"s_waitcnt lgkmcnt({7-k})")
            e(f"buffer_store_dwordx4 {v(28+4*k,4)}, v3, {s(S_WS,4)}, 0 offen{nt_out}")
            if k < 7:
                e("v_add_u32 v3, 12800, v3")
    if opt.aprof:
        stamp(8)
        e("s_waitcnt vmcnt(0)")
        stamp(9)
        e("s_mov_b64 exec, -1")
        e("s_lshl_b32 s60, s2, 4")
        e(f"s_add_u32 s60, s60, {s(s_w)}")
        e("s_lshl_b32 s60, s60, 8")
        e(f"s_add_u32 s60, s60, {PROF_OFF + (2 << 20)}")
        e("v_lshl_add_u32 v63, v2, 2, s60")
        e(f"buffer_store_dword v62, v63, {s(S_WS,4)}, 0 offen")
    e("s_endpgm")

    e("LA_weights:")
    e.c("workgroups 250..254: MFMA operand fragments of the weights, one fragment per wave")
    e(f"s_cmp_ge_u32 {s(s_w)}, 10")
    e("s_cbranch_scc1 LA_end")
    e("v_and_b32 v3, 31, v2")
    e("v_lshrrev_b32 v4, 5, v2")
    e(f"s_cmp_gt_u32 s2, {NCH}")
    e("s_cbranch_scc1 LA_wsi")
    srd(e, S_DST, P + 8, 16 * 640)
    e("v_bfe_u32 v5, v3, 2, 1")
    e("v_lshlrev_b32 v5, 4, v5")
    e("v_lshrrev_b32 v6, 3, v3")
    e("v_lshl_add_u32 v5, v6, 2, v5")
    e("v_and_b32 v6, 3, v3")
    e("v_add_u32 v5, v5, v6")
    e(f"s_lshl_b32 {s(s_t)}, {s(s_w)}, 5")
    e(f"v_add_u32 v5, {s(s_t)}, v5")
    e("v_lshlrev_b32 v5, 1, v5")
    e("v_mul_u32_u24 v6, 5120, v4")
    e("v_add_u32 v5, v5, v6")
    e("v_add_u32 v7, 2560, v5")
    for j in range(8):
        e(f"buffer_load_ushort {v(8+j)}, {'v5' if j < 4 else 'v7'}, {s(S_DST,4)}, 0 offen offset:{(j % 4) * 640}")
    e(f"s_lshl_b32 {s(s_t)}, {s(s_w)}, 10")
    e(f"s_add_u32 {s(s_t)}, {s(s_t)}, {WRAD_OFF}")
    e("s_branch LA_wstore")
    e("LA_wsi:")
    e(f"s_sub_u32 {s(s_t)}, s2, {NCH + 1}")
    e(f"s_mul_i32 {s(s_t)}, {s(s_t)}, 10")
    e(f"s_add_u32 {s(s_t)}, {s(s_t)}, {s(s_w)}")
    e(f"s_cmp_ge_u32 {s(s_t)}, 20")
    e("s_cselect_b32 s47, 1, 0")
    e("s_mul_i32 s48, s47, 20")
    e(f"s_sub_u32 s48, {s(s_t)}, s48")
    e("s_lshr_b32 s49, s48, 2")
    e("s_cmp_ge_u32 s49, 2")
    e(f"s_cselect_b32 {s(S_DST)}, {s(P+12)}, {s(P+10)}")
    e(f"s_cselect_b32 {s(S_DST+1)}, {s(P+13)}, {s(P+11)}")
    e("s_cselect_b32 s50, 3, 2")
    e("s_cselect_b32 s51, 2, 0")
    e(f"s_lshl_b32 {s(S_DST+2)}, s50, 13")
    e(f"s_mov_b32 {s(S_DST+3)}, 0x00020000")
    e("s_sub_u32 s49, s49, s51")
    e("s_lshl_b32 s49, s49, 6")
    e("s_lshl_b32 s50, s47, 5")
    e("s_add_u32 s49, s49, s50")
    e("s_lshl_b32 s49, s49, 7")
    e("s_and_b32 s50, s48, 3")
    e("s_lshl_b32 s50, s50, 1")
    e("s_add_u32 s49, s49, s50")
    e("v_and_b32 v3, 15, v2")
    e("v_lshrrev_b32 v4, 4, v2")
    e("v_lshlrev_b32 v5, 3, v3")
    e("v_lshl_add_u32 v5, v4, 10, v5")
    e("v_add_u32 v5, s49, v5")
    for j in range(8):
        e(f"buffer_load_ushort {v(8+j)}, v5, {s(S_DST,4)}, 0 offen offset:{j * 128}")
    e(f"s_lshl_b32 {s(s_t)}, {s(s_t)}, 10")
    e(f"s_add_u32 {s(s_t)}, {s(s_t)}, {WSI_OFF}")
    e("LA_wstore:")
    e(f"v_lshl_add_u32 v6, v2, 4, {s(s_t)}")
    e("s_waitcnt vmcnt(0)")
    for j in range(4):
        e(f"v_lshl_or_b32 {v(16+j)}, {v(9+2*j)}, 16, {v(8+2*j)}")
    e(f"buffer_store_dwordx4 v[16:19], v6, {s(S_WS,4)}, 0 offen")
    e("LA_end:")
    e("s_endpgm")
    return dict(vgpr=64, sgpr=64)
```

```python
from asmlib import *
from common import *

B_THREADS = 512
SC = 64
JMAX = 2048
NSPLIT = 128 - NPB
RING_W = 3 * 2048
L_RING = 0
L_A = 8 * RING_W
L_META0 = L_A + SC * 1024
MS = SC * 256
L_INV = L_META0 + 2 * MS
L_SLOTN = L_INV + 256
L_SLEN = L_SLOTN + 1024
L_XTRA = L_SLEN + 1024
L_END = L_XTRA + 8192
assert SC * 1280 >= 81920 and L_END <= 163840
T_CNT, T_H1, T_H2, T_TL, T_SORT, T_INFO, T_PRE, TB = 0, 4096, 4352, 4608, 4672, 5248, 5760, 9856
L_WSUM = 2 * TB
L_POS = 20480
PAT = 0xC4000000
SPLITMARK = 0x7F000000


def lds_bytes(opt):
    return L_END


class DsTrack:
    def __init__(self, e):
        self.e, self.n, self.at, self.done = e, 0, {}, 0

    def op(self, text, tag=None):
        self.e(text)
        self.n += 1
        if tag is not None:
            self.at[tag] = self.n

    def need(self, *tags):
        last = max(self.at[t] for t in tags)
        if last > self.done:
            self.e(f"s_waitcnt lgkmcnt({min(self.n - last, 15)})")
            self.done = last


def gen(e, opt):
    sa = Alloc(3, 100)
    s_t0 = sa()
    S_X, S_A, S_WS, S_OUT, S_PART, S_XR = (sa(4, 4) for _ in range(6))
    P = sa(8, 4)
    s_m = sa(16, 2)
    s_ex = P + 6
    s_w, s_chi, s_tile, s_rp = sa(), sa(), sa(), sa()
    s_tot, s_r0, s_J, s_cap, s_act, s_first = (sa(2, 2) for _ in range(6))
    s_TL = sa(8, 4)
    s_mybk, s_tb = sa(), sa()
    s_rho, s_mbeg, s_abeg = sa(), sa(), sa()
    s_pcnt, s_incA, s_incB = sa(), sa(), sa()
    s_off = sa(3)
    s_th = sa(2)
    s_cnt, s_L, s_rbeg = sa(), sa(), sa()
    s_mode, s_msk, s_t1, s_t2, s_t3 = (sa() for _ in range(5))

    va = Alloc(1, 254 if opt.prof else 256)
    vLane = va()
    PV = va(56, 2)
    PS = va(32, 2)
    F = va(24, 2)
    DD = va(16, 2)
    R = va(48, 2)
    FX = va(16, 2)
    XR = va(8, 2)
    AF = va(4, 2)
    W = va(20, 2)
    YF = va(6, 2)
    cA, cY, cS = YF + 1, YF + 3, YF + 5
    SRC0, SRC1 = va(2, 2), va(2, 2)
    cD0, cD1 = SRC0 + 1, SRC1 + 1
    cX0, cX1, aA, aY, aS = (va() for _ in range(5))
    t0, t1, t2 = va(), va(), va()
    PQ = va(4)
    WX = va(4, 2)

    blk = {nm: (PV + 8 * i, PS + 8 * i) for i, nm in enumerate(["S1", "S2", "S3", "D", "C1", "C2", "C3"])}
    blk.update({nm: (PS + 8 * i, F + 8 * i) for i, nm in enumerate(["P0", "Q1", "Q2", "Q3"])})

    def pair(name, i):
        return blk[name][i // 4] + 2 * (i % 4)

    def stamp(i):
        if opt.prof == 1 or (opt.prof == 2 and i in (0, 7, 9, 15, 19)) or (opt.prof in (3, 5) and i in (0, 1, 2, 3, 4, 5, 6, 7, 19)) or (opt.prof == 4 and i in (0, 9, 16, 17, 23, 7, 15, 19)):
            e("s_memtime s[100:101]")
            e("s_waitcnt lgkmcnt(0)")
            e(f"v_writelane_b32 v254, s100, {i}")
            e("s_memrealtime s[100:101]")
            e("s_waitcnt lgkmcnt(0)")
            e(f"v_writelane_b32 v254, s100, {32 + i}")

    def xstamp(i):
        if opt.prof == 5:
            opt.prof = 1
            stamp(i)
            opt.prof = 5

    def stamp_flush():
        if opt.prof:
            e("s_memrealtime s[100:101]")
            e("s_waitcnt lgkmcnt(0)")
            e("v_writelane_b32 v254, s100, 31")
            e(f"s_lshl_b32 s100, s2, 4")
            e(f"s_lshl_b32 s101, {s(s_w)}, 1")
            e("s_add_u32 s100, s100, s101")
            e(f"s_add_u32 s100, s100, {s(s_rho)}")
            e("s_lshl_b32 s100, s100, 8")
            e(f"s_add_u32 s100, s100, {PROF_OFF}")
            e(f"v_lshl_add_u32 v255, {v(vLane)}, 2, s100")
            e(f"buffer_store_dword v254, v255, {s(S_WS,4)}, 0 offen")

    def emit(lst):
        for ln_ in lst:
            e(ln_ if ln_ else "s_nop 0")

    pa = Alloc(PV, PV + 88)
    vRec = pa(32, 2)
    vPos = pa(8)
    vRank = pa(8)
    vU, vEnt, vCnt, vScan, vG, vOne = (pa() for _ in range(6))
    vPat = pa(4, 2)
    q = [pa() for _ in range(12)]
    q4 = pa(10, 2)

    e(f".p2align 8\n.type {KB},@function\n{KB}:")
    e("s_cmp_ge_u32 s2, 256")
    e("s_cbranch_scc1 LB_end")
    if opt.prof:
        e("v_mov_b32 v254, 0")
        e("s_memrealtime s[100:101]")
        e("s_waitcnt lgkmcnt(0)")
        e("v_writelane_b32 v254, s100, 30")
    stamp(0)
    e(f"s_load_dwordx2 {s(P,2)}, s[0:1], 0")
    e(f"s_load_dwordx2 {s(P+2,2)}, s[0:1], 72")
    e(f"s_load_dwordx2 {s(P+4,2)}, s[0:1], 88")
    e(f"v_lshrrev_b32 {v(t0)}, 6, v0")
    e(f"v_and_b32 {v(vLane)}, 63, v0")
    e(f"v_readfirstlane_b32 {s(s_w)}, {v(t0)}")
    e(f"s_and_b32 {s(s_t0)}, s2, 7")
    e(f"s_lshl_b32 {s(s_t0)}, {s(s_t0)}, 5")
    e(f"s_lshr_b32 {s(s_t1)}, s2, 3")
    e(f"s_add_u32 {s(s_t0)}, {s(s_t0)}, {s(s_t1)}")
    e(f"s_and_b32 {s(s_chi)}, {s(s_w)}, 1")
    e(f"s_lshr_b32 {s(s_rp)}, {s(s_w)}, 2")
    e(f"s_lshr_b32 {s(s_tile)}, {s(s_w)}, 1")
    e(f"s_xor_b32 {s(s_tile)}, {s(s_tile)}, {s(s_rp)}")
    e(f"s_lshl_b32 {s(s_mybk)}, {s(s_rp)}, 8")
    e(f"s_add_u32 {s(s_mybk)}, {s(s_mybk)}, {s(s_t0)}")
    e(f"s_mul_i32 {s(s_tb)}, {s(s_rp)}, {TB}")
    e(f"s_mov_b64 {s(s_r0,2)}, 0")
    e(f"s_movk_i32 {s(s_cap)}, {JMAX}")
    e(f"s_movk_i32 {s(s_cap+1)}, {JMAX}")
    e(f"s_mov_b64 {s(s_act,2)}, -1")
    e(f"s_mov_b64 {s(s_first,2)}, -1")
    e(f"s_mov_b32 {s(s_msk)}, 0xffff0000")
    e(f"s_mul_i32 {s(s_rbeg)}, {s(s_w)}, {RING_W}")
    e("s_waitcnt lgkmcnt(0)")
    srd(e, S_WS, P + 4, WS_BYTES)
    e.c("x as rows of 512 bytes; the base sits 1 KiB low and every access adds that back")
    e(f"s_sub_u32 {s(S_X)}, {s(P)}, 1024")
    e(f"s_subb_u32 {s(S_X+1)}, {s(P+1)}, 0")
    e(f"s_or_b32 {s(S_X+1)}, {s(S_X+1)}, 0x02000000")
    e(f"s_mov_b32 {s(S_X+2)}, {N}")
    e(f"s_mov_b32 {s(S_X+3)}, 0x00020000")
    srd(e, S_XR, P, X_BYTES)
    srd(e, S_A, P + 4, A_BYTES, APAY_OFF)
    srd(e, S_OUT, P + 2, X_BYTES)
    srd(e, S_PART, P + 4, N * 1024, PART_OFF)

    e("LB_job:")
    if opt.pf:
        e.c("extent of this die's share of one chunk, for the cache warm-up below")
        e(f"s_andn2_b32 {s(s_t2)}, s2, 7")
        e(f"s_add_u32 {s(s_t2)}, {s(s_t2)}, {s(s_w)}")
        e(f"s_min_u32 {s(s_t2)}, {s(s_t2)}, {NCH - 1}")
        e(f"s_lshl_b32 {s(s_t0)}, {s(s_t2)}, 11")
        e(f"s_and_b32 {s(s_t1)}, s2, 7")
        e(f"s_lshl_b32 {s(s_t1)}, {s(s_t1)}, 7")
        e(f"s_add_u32 {s(s_t0)}, {s(s_t0)}, {s(s_t1)}")
        e(f"s_add_u32 {s(P)}, {s(S_WS)}, {s(s_t0)}")
        e(f"s_addc_u32 {s(P+1)}, {s(S_WS+1)}, 0")
        for i, off in enumerate((0, 124, 1024, 1148)):
            e(f"s_load_dword {s(s_TL+i)}, {s(P,2)}, {TAB_OFF + off}")
    e(f"v_and_b32 {v(vU)}, 255, v0")
    e(f"s_lshl_b32 {s(s_t0)}, {s(s_mybk)}, 2")
    e(f"s_add_u32 {s(s_t0)}, {s(s_t0)}, {TAB_OFF}")
    e(f"v_lshl_add_u32 {v(q[0])}, {v(vU)}, 11, {s(s_t0)}")
    e(f"v_mov_b32 {v(vEnt)}, 0")
    e(f"v_cmp_gt_u32 vcc, {NCH}, {v(vU)}")
    e("s_mov_b64 exec, vcc")
    e(f"buffer_load_dword {v(vEnt)}, {v(q[0])}, {s(S_WS,4)}, 0 offen")
    e("s_mov_b64 exec, -1")
    e.c("fill the step rows with the empty-slot pattern, clear the counters")
    for k in range(4):
        e(f"v_mov_b32 {v(vPat+k)}, {hex(PAT)}")
    e(f"v_lshlrev_b32 {v(q[0])}, 4, v0")
    e(f"v_add_u32 {v(q[0])}, {L_META0}, {v(q[0])}")
    n16 = (2 * MS + 256) // 16
    for k in range((n16 + 511) // 512):
        rem = n16 - 512 * k
        if rem < 512:
            e(f"v_cmp_gt_u32 vcc, {rem}, v0")
            e("s_mov_b64 exec, vcc")
        e(f"ds_write_b128 {v(q[0])}, {v(vPat,4)} offset:{k * 8192}")
    e("s_mov_b64 exec, -1")
    for k in range(4):
        e(f"v_mov_b32 {v(q4+k)}, 0")
    e(f"v_lshl_add_u32 {v(q[0])}, {v(vU)}, 4, {s(s_tb)}")
    e(f"ds_write_b128 {v(q[0])}, {v(q4,4)}")
    e(f"v_cmp_gt_u32 vcc, 33, {v(vU)}")
    e("s_mov_b64 exec, vcc")
    e(f"ds_write_b128 {v(q[0])}, {v(q4,4)} offset:4096")
    e("s_mov_b64 exec, -1")
    e(f"v_mov_b32 {v(vOne)}, 1")
    e(f"v_mul_u32_u24 {v(vG)}, {CH}, {v(vU)}")

    if opt.pf:
        e(f"s_mul_i32 {s(s_t2)}, {s(s_t2)}, {CH}")
        e(f"v_lshlrev_b32 {v(q[1])}, 7, {v(vLane)}")
        e(f"v_and_b32 {v(q[2])}, 0xf80, {v(q[1])}")
        e(f"v_cmp_lt_u32 vcc, 31, {v(vLane)}")
        e("s_waitcnt lgkmcnt(0)")
        for h in range(2):
            a_, b_ = s_TL + 2 * h, s_TL + 2 * h + 1
            e(f"s_and_b32 {s(a_)}, {s(a_)}, 0xffff")
            e(f"s_add_u32 {s(a_)}, {s(a_)}, {s(s_t2)}")
            e(f"s_lshr_b32 {s(s_t0)}, {s(b_)}, 16")
            e(f"s_and_b32 {s(b_)}, {s(b_)}, 0xffff")
            e(f"s_add_u32 {s(b_)}, {s(b_)}, {s(s_t0)}")
            e(f"s_add_u32 {s(b_)}, {s(b_)}, {s(s_t2)}")
            e(f"s_mul_i32 {s(s_TL+4+2*h)}, {s(a_)}, 12")
            e(f"s_andn2_b32 {s(s_TL+4+2*h)}, {s(s_TL+4+2*h)}, 127")
            e(f"s_mul_i32 {s(s_TL+5+2*h)}, {s(b_)}, 12")
        e(f"v_mov_b32 {v(q[3])}, {s(s_TL+4)}")
        e(f"v_mov_b32 {v(q[4])}, {s(s_TL+6)}")
        e(f"v_mov_b32 {v(q[5])}, {s(s_TL+5)}")
        e(f"v_mov_b32 {v(q[6])}, {s(s_TL+7)}")
        e(f"v_cndmask_b32 {v(q[3])}, {v(q[3])}, {v(q[4])}, vcc")
        e(f"v_cndmask_b32 {v(q[5])}, {v(q[5])}, {v(q[6])}, vcc")
        e(f"v_add_u32 {v(q[3])}, {v(q[3])}, {v(q[2])}")
        e(f"v_cmp_lt_u32 vcc, {v(q[3])}, {v(q[5])}")
        e(f"v_add_u32 {v(q[3])}, {REC_OFF}, {v(q[3])}")
        e(f"v_mov_b32 {v(q[4])}, 0xffffff00")
        e(f"v_cndmask_b32 {v(q[3])}, {v(q[4])}, {v(q[3])}, vcc")
        e(f"buffer_load_dword {v(WX)}, {v(q[3])}, {s(S_WS,4)}, 0 offen")
        e(f"s_lshl_b32 {s(s_TL)}, {s(s_TL)}, 5")
        e(f"s_andn2_b32 {s(s_TL)}, {s(s_TL)}, 127")
        e(f"s_lshl_b32 {s(s_TL+1)}, {s(s_TL+1)}, 5")
        e(f"v_add_u32 {v(WX+2)}, {s(s_TL)}, {v(q[1])}")
        e(f"v_cmp_gt_u32 vcc, {s(s_TL+1)}, {v(WX+2)}")
        e("s_nop 1")
        e(f"v_cndmask_b32 {v(WX+2)}, {v(q[4])}, {v(WX+2)}, vcc")
        if opt.pf == 3:
            e(f"buffer_load_dword {v(WX+1)}, {v(WX+2)}, {s(S_A,4)}, 0 offen")

    e.c("per-lane constants; consumer lane (e, h) serves slot e ^ (16*chi)")
    e(f"s_lshl_b32 {s(s_t0)}, {s(s_chi)}, 4")
    e(f"v_and_b32 {v(t0)}, 31, {v(vLane)}")
    e(f"v_xor_b32 {v(t0)}, {s(s_t0)}, {v(t0)}")
    e(f"v_lshrrev_b32 {v(t1)}, 5, {v(vLane)}")
    e(f"v_lshlrev_b32 {v(cY)}, 3, {v(t0)}")
    e(f"v_bfe_u32 {v(t2)}, {v(t0)}, 3, 1")
    e(f"v_xor_b32 {v(cA)}, {v(t2)}, {v(t1)}")
    e(f"v_lshlrev_b32 {v(cA)}, 4, {v(cA)}")
    e(f"v_lshl_add_u32 {v(cA)}, {v(t0)}, 5, {v(cA)}")
    e(f"v_xor_b32 {v(t2)}, {v(t2)}, {v(t1)}")
    e(f"v_lshlrev_b32 {v(t2)}, 1, {v(t2)}")
    e(f"v_and_b32 {v(cX1)}, 1, {v(t0)}")
    e(f"v_or_b32 {v(t2)}, {v(t2)}, {v(cX1)}")
    e(f"v_lshlrev_b32 {v(t2)}, 4, {v(t2)}")
    e(f"v_lshl_add_u32 {v(t2)}, {v(cX1)}, 10, {v(t2)}")
    e(f"v_lshrrev_b32 {v(cX0)}, 1, {v(t0)}")
    e(f"v_lshl_add_u32 {v(cX0)}, {v(cX0)}, 6, {v(t2)}")
    e(f"v_add_u32 {v(cX0)}, {s(s_rbeg)}, {v(cX0)}")
    e(f"v_xor_b32 {v(cX1)}, 16, {v(cX0)}")
    e(f"v_lshrrev_b32 {v(t0)}, 2, {v(vLane)}")
    e(f"v_lshlrev_b32 {v(cS)}, 4, {v(t0)}")
    e(f"v_bfe_u32 {v(t0)}, {v(vLane)}, 4, 1")
    e(f"v_lshlrev_b32 {v(t0)}, 1, {v(t0)}")
    e(f"v_and_b32 {v(t1)}, 3, {v(vLane)}")
    e(f"v_xor_b32 {v(t0)}, {v(t0)}, {v(t1)}")
    e(f"v_lshlrev_b32 {v(cD0)}, 4, {v(t0)}")
    e(f"v_xor_b32 {v(cD1)}, 16, {v(cD0)}")
    e(f"v_add_u32 {v(cD0)}, 1024, {v(cD0)}")
    e(f"s_lshl_b32 {s(s_t0)}, {s(s_chi)}, 10")
    e(f"s_add_u32 {s(s_t0)}, {s(s_t0)}, {WRAD_OFF}")
    e(f"v_lshl_add_u32 {v(t2)}, {v(vLane)}, 4, {s(s_t0)}")

    e(f"s_waitcnt vmcnt({[0, 1, 1, 2][opt.pf]})")
    stamp(1)
    e(f"v_lshrrev_b32 {v(vCnt)}, 16, {v(vEnt)}")
    e(f"v_and_b32 {v(vEnt)}, 0xffff, {v(vEnt)}")
    e(f"v_mov_b32 {v(vScan)}, {v(vCnt)}")
    e(f"v_add_u32 {v(vG)}, {v(vG)}, {v(vEnt)}")
    wave_incl_scan(e, vScan)
    e(f"s_lshl_b32 {s(s_t0)}, {s(s_w)}, 2")
    e(f"v_mov_b32 {v(q[0])}, {s(s_t0)}")
    e(f"v_cmp_eq_u32 vcc, 63, {v(vLane)}")
    e("s_mov_b64 exec, vcc")
    e(f"ds_write_b32 {v(q[0])}, {v(vScan)} offset:{L_WSUM}")
    e("s_mov_b64 exec, -1")
    e(f"v_sub_u32 {v(vScan)}, {v(vScan)}, {v(vCnt)}")
    e(f"v_mov_b32 {v(q[0])}, 0")
    e("s_waitcnt lgkmcnt(0)")
    e("s_barrier")
    e(f"ds_read_b128 {v(q4,4)}, {v(q[0])} offset:{L_WSUM}")
    e(f"ds_read_b128 {v(q4+4,4)}, {v(q[0])} offset:{L_WSUM + 16}")
    e("s_waitcnt lgkmcnt(0)")
    for k in range(8):
        e(f"v_readfirstlane_b32 {s(s_TL+k)}, {v(q4+k)}")
    e("s_nop 0")
    for h in range(2):
        for k in range(1, 4):
            e(f"s_add_u32 {s(s_TL+4*h+k)}, {s(s_TL+4*h+k)}, {s(s_TL+4*h+k-1)}")
        e(f"s_mov_b32 {s(s_tot+h)}, {s(s_TL+4*h+3)}")
        e(f"s_sub_u32 {s(s_J+h)}, {s(s_tot+h)}, {s(s_r0+h)}")
        e(f"s_min_u32 {s(s_J+h)}, {s(s_J+h)}, {s(s_cap+h)}")
    e(f"s_cmp_eq_u32 {s(s_rp)}, 0")
    e(f"s_cselect_b32 {s(s_t2)}, {s(s_J)}, {s(s_J+1)}")
    e(f"s_cselect_b32 {s(s_t3)}, {s(s_r0)}, {s(s_r0+1)}")
    e(f"s_cselect_b64 {s(s_TL,2)}, {s(s_TL,2)}, {s(s_TL+4,2)}")
    e(f"s_cselect_b32 {s(s_TL+2)}, {s(s_TL+2)}, {s(s_TL+6)}")
    e(f"s_bitcmp1_b32 {s(s_w)}, 0")
    e(f"s_cselect_b32 {s(s_t0)}, {s(s_TL)}, 0")
    e(f"s_cselect_b32 {s(s_t1)}, {s(s_TL+2)}, {s(s_TL+1)}")
    e(f"s_bitcmp1_b32 {s(s_w)}, 1")
    e(f"s_cselect_b32 {s(s_t0)}, {s(s_t1)}, {s(s_t0)}")
    e(f"s_sub_u32 {s(s_t0)}, {s(s_t0)}, {s(s_t3)}")
    e(f"v_add_u32 {v(vScan)}, {s(s_t0)}, {v(vScan)}")
    e.c("list the global positions of the job's records")
    e(f"v_sub_u32 {v(q[0])}, 0, {v(vScan)}")
    e(f"v_max_i32 {v(q[0])}, 0, {v(q[0])}")
    e(f"v_sub_u32 {v(q[1])}, {s(s_t2)}, {v(vScan)}")
    e(f"v_min_i32 {v(q[1])}, {v(q[1])}, {v(vCnt)}")
    e(f"v_sub_u32 {v(q[1])}, {v(q[1])}, {v(q[0])}")
    e(f"v_add_u32 {v(vG)}, {v(vG)}, {v(q[0])}")
    e(f"v_add_u32 {v(q[0])}, {v(q[0])}, {v(vScan)}")
    e(f"s_mul_i32 {s(s_t1)}, {s(s_rp)}, {JMAX * 4}")
    e(f"s_add_u32 {s(s_t1)}, {s(s_t1)}, {L_POS}")
    e(f"v_lshl_add_u32 {v(q[0])}, {v(q[0])}, 2, {s(s_t1)}")
    e("LB_pl:")
    for j in range(4):
        e(f"v_cmpx_lt_i32 vcc, {j}, {v(q[1])}")
        e(f"ds_write_b32 {v(q[0])}, {v(vG)} offset:{4 * j}")
        e(f"v_add_u32 {v(vG)}, 1, {v(vG)}")
    e(f"v_add_u32 {v(q[0])}, 16, {v(q[0])}")
    e(f"v_subrev_u32 {v(q[1])}, 4, {v(q[1])}")
    e("s_cbranch_execnz LB_pl")
    e("s_mov_b64 exec, -1")
    e(f"v_lshlrev_b32 {v(q[0])}, 2, v0")
    for k in range(8):
        if k & 3:
            e(f"v_add_u32 {v(q[1])}, {512 * (k & 3)}, v0")
        e(f"v_cmp_gt_u32 {s(s_m+2*k,2)}, {s(s_J+(k>>2))}, {v(q[1]) if k & 3 else 'v0'}")
    e(f"v_mov_b32 {v(q[2])}, 0xffffff")
    e("s_waitcnt lgkmcnt(0)")
    e("s_barrier")
    stamp(2)
    for k in range(8):
        e(f"ds_read_b32 {v(vPos+k)}, {v(q[0])} offset:{L_POS + 2048 * k}")
    e.c("positions of absent records point past the record and attribute arrays")
    e(f"s_mov_b32 {s(S_WS+2)}, {REC_OFF + E * 12}")
    e(f"s_mov_b32 {s(s_t0)}, {REC_OFF}")
    for k in range(8):
        e(f"s_waitcnt lgkmcnt({7-k})")
        e(f"v_cndmask_b32 {v(vPos+k)}, {v(q[2])}, {v(vPos+k)}, {s(s_m+2*k,2)}")
        e(f"v_mad_u32_u24 {v(q[3+k])}, {v(vPos+k)}, 12, {s(s_t0)}")
        e(f"buffer_load_dwordx3 {v(vRec+4*k,3)}, {v(q[3+k])}, {s(S_WS,4)}, 0 offen")
    e(f"s_mov_b32 {s(S_WS+2)}, {hex(WS_BYTES)}")
    ant = " nt" if opt.b_nt_a else ""

    def a_first():
        for k in range(4):
            e(f"v_lshlrev_b32 {v(vPos+k)}, 5, {v(vPos+k)}")
            e(f"buffer_load_dwordx4 {v(F+8*k,4)}, {v(vPos+k)}, {s(S_A,4)}, 0 offen{ant}")
            e(f"buffer_load_dwordx4 {v(F+8*k+4,4)}, {v(vPos+k)}, {s(S_A,4)}, 0 offen offset:16{ant}")

    def w_load():
        for p in range(5):
            e(f"buffer_load_dwordx4 {v(W+4*p,4)}, {v(t2)}, {s(S_WS,4)}, 0 offen" + (" offset:2048" if p & 1 else ""))
            if p & 1:
                e(f"v_add_u32 {v(t2)}, 4096, {v(t2)}")

    if opt.a_early == 1:
        e("s_barrier")
        a_first()
    if opt.pf == 2 and opt.pf_at < 0:
        e("s_barrier")
        e(f"buffer_load_dword {v(WX+1)}, {v(WX+2)}, {s(S_A,4)}, 0 offen")
    xstamp(20)
    if opt.prof == 5:
        e("s_waitcnt vmcnt(7)")
        xstamp(21)
        e("s_waitcnt vmcnt(0)")
        xstamp(22)
    e.c("rank of every record inside its node")
    for k in range(8):
        e(f"s_waitcnt vmcnt({(15 if opt.a_early == 1 else 7) + (opt.pf == 2 and k > opt.pf_at) - k})")
        if opt.pf == 2 and k == opt.pf_at:
            e(f"buffer_load_dword {v(WX+1)}, {v(WX+2)}, {s(S_A,4)}, 0 offen")
        e(f"v_lshrrev_b32 {v(vRec+4*k+2)}, 18, {v(vRec+4*k+2)}")
        e(f"v_and_b32 {v(vRec+4*k+2)}, 0x1fc, {v(vRec+4*k+2)}")
        e(f"v_lshrrev_b32 {v(vRec+4*k+3)}, {29 if opt.bins else 31}, {v(vRec+4*k+1) if opt.bins else v(vOne)}")
        e(f"v_lshl_add_u32 {v(vRec+4*k+3)}, {v(vRec+4*k+2)}, 1, {v(vRec+4*k+3)}")
        e(f"v_lshlrev_b32 {v(vRec+4*k+3)}, 2, {v(vRec+4*k+3)}")
        e(f"s_mov_b64 exec, {s(s_m+2*k,2)}")
        e(f"ds_add_rtn_u32 {v(vRank+k)}, {v(vRec+4*k+3)}, {v(vOne)} offset:{T_CNT + TB * (k >> 2)}")
        e("s_mov_b64 exec, -1")
    e("s_waitcnt lgkmcnt(0)")
    xstamp(23)
    e("s_barrier")
    stamp(3)

    e.c("waves 0 and 4: order the nodes by degree, split the largest, lay out the tiles")
    e(f"s_and_b32 {s(s_t0)}, {s(s_w)}, 3")
    e(f"s_cmp_lg_u32 {s(s_t0)}, 0")
    e("s_cbranch_scc1 LB_idle")
    d0, d1, k0, k1, o0, o1, ad, hv, hs, ln, jj, sp = q
    e(f"v_lshl_add_u32 {v(ad)}, {v(vLane)}, 2, {s(s_tb)}")
    e(f"v_lshl_add_u32 {v(hv)}, {v(vLane)}, 5, {s(s_tb)}")
    for i in range(4):
        e(f"ds_read_b128 {v(R+4*i,4)}, {v(hv)} offset:{T_CNT + 2048 * (i >> 1) + 16 * (i & 1)}")
    e(f"v_cmp_gt_u32 {s(s_ex,2)}, {NPB - 64}, {v(vLane)}")
    for i, d in enumerate((d0, d1)):
        e(f"s_waitcnt lgkmcnt({2 - 2 * i})")
        e(f"v_add3_u32 {v(d)}, {v(R+8*i)}, {v(R+8*i+1)}, {v(R+8*i+2)}")
        e(f"v_add3_u32 {v(d)}, {v(d)}, {v(R+8*i+3)}, {v(R+8*i+4)}")
        e(f"v_add3_u32 {v(d)}, {v(d)}, {v(R+8*i+5)}, {v(R+8*i+6)}")
        e(f"v_add_u32 {v(d)}, {v(d)}, {v(R+8*i+7)}")
    for d, k in ((d0, k0), (d1, k1)):
        e(f"v_min_u32 {v(k)}, 63, {v(d)}")
        e(f"v_sub_u32 {v(k)}, 63, {v(k)}")
        e(f"v_lshlrev_b32 {v(k)}, 2, {v(k)}")
    e(f"v_add_u32 {v(hv)}, {s(s_tb)}, {v(k0)}")
    e(f"v_add_u32 {v(hs)}, {s(s_tb)}, {v(k1)}")
    e(f"ds_add_rtn_u32 {v(o0)}, {v(hv)}, {v(vOne)} offset:{T_H1}")
    e(f"s_mov_b64 exec, {s(s_ex,2)}")
    e(f"ds_add_rtn_u32 {v(o1)}, {v(hs)}, {v(vOne)} offset:{T_H1}")
    e("s_mov_b64 exec, -1")
    e(f"ds_read_b32 {v(hv)}, {v(ad)} offset:{T_H1}")
    e(f"v_lshl_or_b32 {v(d0)}, {v(d0)}, 8, {v(vLane)}")
    e(f"v_lshl_or_b32 {v(d1)}, {v(d1)}, 8, {v(vLane)}")
    e(f"v_or_b32 {v(d1)}, 64, {v(d1)}")
    e("s_waitcnt lgkmcnt(0)")
    e(f"v_mov_b32 {v(hs)}, {v(hv)}")
    wave_incl_scan(e, hs)
    e(f"v_sub_u32 {v(hs)}, {v(hs)}, {v(hv)}")
    e(f"ds_bpermute_b32 {v(k0)}, {v(k0)}, {v(hs)}")
    e(f"ds_bpermute_b32 {v(k1)}, {v(k1)}, {v(hs)}")
    e(f"v_cmp_gt_u32 vcc, {NSPLIT}, {v(vLane)}")
    e(f"v_lshlrev_b32 {v(jj)}, 1, {v(vLane)}")
    e(f"v_subrev_u32 {v(jj)}, {NSPLIT}, {v(jj)}")
    e(f"v_cndmask_b32 {v(jj)}, {v(jj)}, {v(vLane)}, vcc")
    e(f"v_cndmask_b32 {v(sp)}, 0, {v(vOne)}, vcc")
    e(f"v_lshl_add_u32 {v(jj)}, {v(jj)}, 2, {s(s_tb)}")
    e(f"v_add_u32 {v(jj)}, {T_SORT}, {v(jj)}")
    e("s_waitcnt lgkmcnt(0)")
    e(f"v_add_u32 {v(k0)}, {v(k0)}, {v(o0)}")
    e(f"v_add_u32 {v(k1)}, {v(k1)}, {v(o1)}")
    e(f"v_lshl_add_u32 {v(k0)}, {v(k0)}, 2, {s(s_tb)}")
    e(f"v_lshl_add_u32 {v(k1)}, {v(k1)}, 2, {s(s_tb)}")
    e(f"ds_write_b32 {v(k0)}, {v(d0)} offset:{T_SORT}")
    e(f"s_mov_b64 exec, {s(s_ex,2)}")
    e(f"ds_write_b32 {v(k1)}, {v(d1)} offset:{T_SORT}")
    e("s_mov_b64 exec, -1")
    e(f"ds_read2_b32 {v(q4,2)}, {v(jj)} offset0:0 offset1:1")
    e("s_waitcnt lgkmcnt(0)")
    la, lb = q4 + 8, q4 + 9
    e(f"v_lshrrev_b32 {v(la)}, 8, {v(q4)}")
    e(f"v_lshrrev_b32 {v(lb)}, 8, {v(q4+1)}")
    e(f"v_lshrrev_b32 {v(d1)}, 1, {v(la)}")
    e(f"v_sub_u32 {v(d0)}, {v(la)}, {v(d1)}")
    e(f"v_cndmask_b32 {v(la)}, {v(la)}, {v(d0)}, vcc")
    e(f"v_cndmask_b32 {v(lb)}, {v(lb)}, {v(d1)}, vcc")
    e(f"v_max_u32 {v(ln)}, {v(la)}, {v(lb)}")
    e(f"v_min_u32 {v(k0)}, 63, {v(ln)}")
    e(f"v_sub_u32 {v(k0)}, 63, {v(k0)}")
    e(f"v_lshlrev_b32 {v(k0)}, 2, {v(k0)}")
    e(f"v_add_u32 {v(hv)}, {s(s_tb)}, {v(k0)}")
    e(f"ds_add_rtn_u32 {v(o0)}, {v(hv)}, {v(vOne)} offset:{T_H2}")
    e(f"ds_read_b32 {v(hv)}, {v(ad)} offset:{T_H2}")
    e(f"v_and_b32 {v(q4)}, 0xff, {v(q4)}")
    e(f"v_and_b32 {v(q4+1)}, 0xff, {v(q4+1)}")
    e("s_waitcnt lgkmcnt(0)")
    e(f"v_mov_b32 {v(hs)}, {v(hv)}")
    wave_incl_scan(e, hs)
    e(f"v_sub_u32 {v(hs)}, {v(hs)}, {v(hv)}")
    e(f"ds_bpermute_b32 {v(k0)}, {v(k0)}, {v(hs)}")
    e("s_waitcnt lgkmcnt(0)")
    e(f"v_add_u32 {v(k0)}, {v(k0)}, {v(o0)}")
    e(f"v_lshrrev_b32 {v(k1)}, 4, {v(k0)}")
    e(f"v_lshl_add_u32 {v(hv)}, {v(k1)}, 2, {s(s_tb)}")
    e(f"v_max_u32 {v(ln)}, 1, {v(ln)}")
    e(f"ds_max_u32 {v(hv)}, {v(ln)} offset:{T_TL}")
    e(f"v_mov_b32 {v(hs)}, {s(s_tb)}")
    e(f"ds_read_b128 {v(q4+4,4)}, {v(hs)} offset:{T_TL}")
    e(f"ds_read_b32 {v(ln)}, {v(hv)} offset:{T_TL}")
    e.c("slot table: byte offset of the output row, or the mark of a second half")
    e(f"s_mul_i32 {s(s_t0)}, {s(s_mybk)}, {NPB}")
    e(f"v_add_u32 {v(q4+2)}, {s(s_t0)}, {v(q4)}")
    e(f"v_add_u32 {v(q4+3)}, {s(s_t0)}, {v(q4+1)}")
    e(f"v_lshlrev_b32 {v(q4+2)}, 9, {v(q4+2)}")
    e(f"v_lshlrev_b32 {v(q4+3)}, 9, {v(q4+3)}")
    e(f"v_mov_b32 {v(d1)}, {hex(SPLITMARK)}")
    e(f"v_cndmask_b32 {v(q4+3)}, {v(q4+3)}, {v(d1)}, vcc")
    e(f"s_lshl_b32 {s(s_t0)}, {s(s_rp)}, 9")
    e(f"s_add_u32 {s(s_t0)}, {s(s_t0)}, {L_SLOTN}")
    e(f"v_lshl_add_u32 {v(hv)}, {v(k0)}, 3, {s(s_t0)}")
    e(f"ds_write_b64 {v(hv)}, {v(q4+2,2)}")
    e("s_waitcnt lgkmcnt(1)")
    e(f"v_mov_b32 {v(o1)}, 0")
    for t in range(3):
        e(f"v_cmp_lt_u32 {s(s_ex,2)}, {t}, {v(k1)}")
        e(f"v_add_u32 {v(d0)}, {v(o1)}, {v(q4+4+t)}")
        e("s_nop 0")
        e(f"v_cndmask_b32 {v(o1)}, {v(o1)}, {v(d0)}, {s(s_ex,2)}")
    e(f"v_and_b32 {v(k0)}, 15, {v(k0)}")
    e(f"v_lshlrev_b32 {v(k0)}, 1, {v(k0)}")
    e(f"v_lshl_add_u32 {v(k0)}, {v(o1)}, 5, {v(k0)}")
    e(f"v_lshl_or_b32 {v(d0)}, {v(sp)}, 20, {v(k0)}")
    e(f"v_add_u32 {v(d1)}, 1, {v(k0)}")
    e(f"v_lshl_add_u32 {v(q4)}, {v(q4)}, 2, {s(s_tb)}")
    e(f"v_lshl_add_u32 {v(q4+1)}, {v(q4+1)}, 2, {s(s_tb)}")
    e(f"ds_write_b32 {v(q4)}, {v(d0)} offset:{T_INFO}")
    e("s_not_b64 exec, vcc")
    e(f"ds_write_b32 {v(q4+1)}, {v(d1)} offset:{T_INFO}")
    e("s_mov_b64 exec, -1")
    e.c("rows [first empty, end) of both slots")
    e(f"v_add_lshl_u32 {v(ln)}, {v(ln)}, {v(o1)}, 16")
    e(f"v_add3_u32 {v(la)}, {v(la)}, {v(o1)}, {v(ln)}")
    e(f"v_add3_u32 {v(lb)}, {v(lb)}, {v(o1)}, {v(ln)}")
    e(f"ds_write_b64 {v(hv)}, {v(la,2)} offset:{L_SLEN - L_SLOTN}")
    e("s_branch LB_nosort")
    e("LB_idle:")
    e(f"s_cmp_eq_u32 {s(s_t0)}, 3")
    e("s_cbranch_scc1 LB_nopre")
    e.c("waves 1, 2, 5, 6: first rank of every source bin of a node")
    e(f"s_lshl_b32 {s(s_t0)}, {s(s_t0)}, 11")
    e(f"s_add_u32 {s(s_t0)}, {s(s_t0)}, {s(s_tb)}")
    e(f"s_sub_u32 {s(s_t0)}, {s(s_t0)}, 2048")
    e(f"v_lshl_add_u32 {v(hv)}, {v(vLane)}, 5, {s(s_t0)}")
    e(f"ds_read_b128 {v(R,4)}, {v(hv)} offset:{T_CNT}")
    e(f"ds_read_b128 {v(R+4,4)}, {v(hv)} offset:{T_CNT + 16}")
    e(f"v_mov_b32 {v(R+8)}, 0")
    e("s_waitcnt lgkmcnt(0)")
    for i in range(1, 8):
        e(f"v_add_u32 {v(R+8+i)}, {v(R+7+i)}, {v(R+i-1)}")
    e(f"ds_write_b128 {v(hv)}, {v(R+8,4)} offset:{T_PRE}")
    e(f"ds_write_b128 {v(hv)}, {v(R+12,4)} offset:{T_PRE + 16}")
    e("LB_nopre:")
    a_first()
    w_load()
    e("LB_nosort:")
    e("s_waitcnt lgkmcnt(0)")
    e("s_barrier")
    stamp(4)
    e(f"v_mov_b32 {v(q[0])}, 0")
    e(f"ds_read_b128 {v(q4,4)}, {v(q[0])} offset:{T_TL}")
    e(f"ds_read_b128 {v(q4+4,4)}, {v(q[0])} offset:{TB + T_TL}")
    for k in range(4):
        e(f"ds_read_b32 {v(q[3+k])}, {v(vRec+4*k+2)} offset:{T_INFO}")
        e(f"ds_read_b32 {v(vRec+4*k+3)}, {v(vRec+4*k+3)} offset:{T_PRE}")
    e("s_waitcnt lgkmcnt(8)")
    for k in range(8):
        e(f"v_readfirstlane_b32 {s(s_TL+k)}, {v(q4+k)}")
    e.c("s_TL holds running sums of the tile lengths; a job that does not fit is halved")
    e(f"s_mov_b32 {s(s_t1)}, 0")
    for h in range(2):
        for k in range(1, 4):
            e(f"s_add_u32 {s(s_TL+4*h+k)}, {s(s_TL+4*h+k)}, {s(s_TL+4*h+k-1)}")
    e(f"s_max_u32 {s(s_t0)}, {s(s_TL+3)}, {s(s_TL+7)}")
    e(f"s_cmp_gt_u32 {s(s_t0)}, {SC}")
    e("s_cbranch_scc1 LB_shrink")

    def scatter(h):
        e(f"s_mov_b32 {s(s_t0)}, {L_META0 + MS * h}")
        for k in range(4 * h, 4 * h + 4):
            inf, rk = q[3 + k], vRank + k
            e(f"v_add_u32 {v(rk)}, {v(rk)}, {v(vRec+4*k+3)}")
            e(f"v_lshrrev_b32 {v(q[0])}, 20, {v(inf)}")
            e(f"v_and_b32 {v(q[1])}, {v(q[0])}, {v(rk)}")
            e(f"v_lshrrev_b32 {v(rk)}, {v(q[0])}, {v(rk)}")
            e(f"v_lshl_add_u32 {v(rk)}, {v(rk)}, 5, {v(q[1])}")
            e(f"v_add_u32 {v(inf)}, {v(inf)}, {v(rk)}")
            e(f"v_and_b32 {v(inf)}, 0x7ff, {v(inf)}")
            e(f"v_lshl_add_u32 {v(rk)}, {v(inf)}, 3, {s(s_t0)}")
            if h:
                e(f"v_mov_b32 {v(PQ+k-4)}, -1")
            e(f"s_mov_b64 exec, {s(s_m+2*k,2)}")
            e(f"ds_write_b64 {v(rk)}, {v(vRec+4*k,2)}")
            if h:
                e(f"v_lshl_or_b32 {v(PQ+k-4)}, {v(inf)}, 20, {v(vPos+k)}")
            e("s_mov_b64 exec, -1")

    e("s_waitcnt lgkmcnt(0)")
    for k in range(4, 8):
        e(f"ds_read_b32 {v(q[3+k])}, {v(vRec+4*k+2)} offset:{T_INFO + TB}")
        e(f"ds_read_b32 {v(vRec+4*k+3)}, {v(vRec+4*k+3)} offset:{T_PRE + TB}")
    scatter(0)
    e(f"s_and_b32 {s(s_t0)}, {s(s_w)}, 3")
    e("s_cbranch_scc1 LB_aissued")
    a_first()
    w_load()
    e("LB_aissued:")

    def a_commit(qreg, masks, tmp):
        out = []
        for k in range(4):
            qr = qreg(k)
            out.append([f"v_lshlrev_b32 {v(tmp)}, 5, {v(qr)}",
                        f"v_lshlrev_b32 {v(qr)}, 1, {v(qr)}",
                        f"v_and_or_b32 {v(tmp)}, {v(qr)}, 16, {v(tmp)}",
                        f"v_xor_b32 {v(qr)}, 16, {v(tmp)}"])
            out.append([f"s_mov_b64 exec, {masks(k)}",
                        f"ds_write_b128 {v(tmp)}, {v(F+8*k,4)} offset:{L_A}",
                        f"ds_write_b128 {v(qr)}, {v(F+8*k+4,4)} offset:{L_A}",
                        "s_mov_b64 exec, -1"])
        return out

    def a_zero_prep(rho, ra):
        e(f"v_and_b32 {v(ra)}, 0x1fc, v0")
        e(f"v_add_u32 {v(ra)}, {L_SLEN + 512 * rho}, {v(ra)}")
        e(f"ds_read_b32 {v(ra)}, {v(ra)}")

    def a_zero(ra, rb, rc, z):
        lab = e.label("zero")
        for k in range(4):
            e(f"v_mov_b32 {v(z+k)}, 0")
        e(f"v_bfe_u32 {v(rb)}, v0, 1, 1")
        e(f"v_add_u32 {v(ra)}, {v(ra)}, {v(rb)}")
        e(f"v_lshrrev_b32 {v(rb)}, 16, {v(ra)}")
        e(f"v_and_b32 {v(ra)}, 0xffff, {v(ra)}")
        e(f"v_sub_u32 {v(rb)}, {v(rb)}, {v(ra)}")
        e(f"v_lshlrev_b32 {v(ra)}, 10, {v(ra)}")
        e(f"v_and_b32 {v(rc)}, 0x7c, v0")
        e(f"v_lshl_add_u32 {v(ra)}, {v(rc)}, 3, {v(ra)}")
        e(f"v_and_b32 {v(rc)}, 1, v0")
        e(f"v_lshl_add_u32 {v(ra)}, {v(rc)}, 4, {v(ra)}")
        e(f"{lab}:")
        for j in range(2):
            e(f"v_cmpx_lt_i32 vcc, {2 * j}, {v(rb)}")
            e(f"ds_write_b128 {v(ra)}, {v(z,4)} offset:{L_A + 2048 * j}")
        e(f"v_add_u32 {v(ra)}, 4096, {v(ra)}")
        e(f"v_subrev_u32 {v(rb)}, 4, {v(rb)}")
        e(f"s_cbranch_execnz {lab}")
        e("s_mov_b64 exec, -1")

    wraps = []

    def src_next(ph):
        a, b = e.label("wrap"), e.label("back")
        wraps.append((a, b))
        return [f"v_add_u32 {v(aS)}, {s(s_incB if ph == 2 else s_incA)}, {v(aS)}",
                f"s_sub_u32 {s(s_pcnt)}, {s(s_pcnt)}, 1", f"s_cbranch_scc1 {a}", f"{b}:"] + src_read()

    def src_read():
        return [f"ds_read_u16 {v(SRC0)}, {v(aS)} offset:6", f"ds_read_u16 {v(SRC1)}, {v(aS)} offset:14"]

    def dma(ph):
        return [f"s_add_u32 m0, {s(s_rbeg)}, {ph * 2048}",
                None,
                f"buffer_load_dwordx4 {v(SRC0,2)}, {s(S_X,4)}, {s(s_off+ph)} idxen offen lds",
                f"buffer_load_dwordx4 {v(SRC1,2)}, {s(S_X,4)}, {s(s_off+ph)} idxen offen offset:1024 lds"]

    def x_read(slot):
        return [f"ds_read_b128 {v(XR,4)}, {v(cX0)} offset:{slot * 2048}",
                f"ds_read_b128 {v(XR+4,4)}, {v(cX1)} offset:{slot * 2048}"]

    def pass_setup():
        e(f"v_add_u32 {v(aA)}, {s(s_abeg)}, {v(cA)}")
        e(f"v_add_u32 {v(aY)}, {s(s_mbeg)}, {v(cY)}")
        e(f"ds_read_b128 {v(AF,4)}, {v(aA)}")
        e(f"s_sub_u32 {s(s_cnt)}, {s(s_L)}, 1")

    def round_params(rho):
        c = s_TL + 4 * rho
        e(f"s_bitcmp1_b32 {s(s_tile)}, 0")
        e(f"s_cselect_b32 {s(s_t0)}, {s(c)}, 0")
        e(f"s_cselect_b32 {s(s_t1)}, {s(c+1)}, {s(c)}")
        e(f"s_cselect_b32 {s(s_t2)}, {s(c+2)}, {s(c+1)}")
        e(f"s_cselect_b32 {s(s_t3)}, {s(c+3)}, {s(c+2)}")
        e(f"s_bitcmp1_b32 {s(s_tile)}, 1")
        e(f"s_cselect_b32 {s(s_t0)}, {s(s_t2)}, {s(s_t0)}")
        e(f"s_cselect_b32 {s(s_t1)}, {s(s_t3)}, {s(s_t1)}")
        e(f"s_sub_u32 {s(s_L)}, {s(s_t1)}, {s(s_t0)}")
        e(f"s_lshl_b32 {s(s_abeg)}, {s(s_t0)}, 10")
        e(f"s_add_u32 {s(s_abeg)}, {s(s_abeg)}, {L_A}")
        e(f"s_lshl_b32 {s(s_mbeg)}, {s(s_t0)}, 8")
        e(f"s_add_u32 {s(s_mbeg)}, {s(s_mbeg)}, {L_META0 + MS * rho}")
        e(f"s_mul_i32 {s(s_pcnt)}, {s(s_L)}, 3")
        e(f"s_sub_u32 {s(s_pcnt)}, {s(s_pcnt)}, 1")
        e(f"s_mov_b32 {s(s_incA)}, 0")
        e(f"s_movk_i32 {s(s_incB)}, 256")
        e(f"s_lshl_b32 {s(s_t0)}, {s(s_chi)}, 6")
        for ph in range(3):
            e(f"s_add_u32 {s(s_off+ph)}, {s(s_t0)}, {128 * (ph + 1)}")
        e(f"v_add_u32 {v(aS)}, {s(s_mbeg)}, {v(cS)}")

    def prime(lo=0, hi=3):
        if lo == 0:
            e.c("prime the x ring with three gathers")
            emit(src_read())
        for g in range(lo, hi):
            e("s_waitcnt lgkmcnt(0)")
            emit(dma(g) + src_next(g))

    round_params(0)
    e(f"s_mov_b32 {s(s_rho)}, 0")
    a_zero_prep(0, q[2])
    e("s_waitcnt lgkmcnt(0)")
    e("s_barrier")
    stamp(5)
    ps = opt.prime_split
    prime(0, ps)
    stamp(6)
    a_zero(q[2], q[1], q[0], q4)
    if ps == 3:
        scatter(1)
    xstamp(24)
    e(f"s_waitcnt vmcnt({2 * ps})")
    xstamp(25)
    for g_ in a_commit(lambda k: q[3 + k], lambda k: s(s_m + 2 * k, 2), q[0]):
        emit(g_)
    xstamp(26)
    if ps < 3:
        prime(ps, 3)
        xstamp(27)
        e("s_barrier")
        xstamp(28)
        scatter(1)
        e("s_waitcnt vmcnt(4)")
    else:
        e("s_waitcnt vmcnt(4) lgkmcnt(0)")
        e("s_barrier")

    e("LB_round:")
    stamp(7)
    if opt.prof:
        e(f"v_writelane_b32 v254, {s(s_L)}, 29")
    emit(x_read(0))
    pass_setup()

    def regs(x):
        return [pair(x, i) for i in range(8)] if isinstance(x, str) else [x + 2 * i for i in range(8)]

    def pk_fma(d, a, b):
        return [f"v_pk_fma_f32 {v(p,2)}, {v(x,2)}, {v(y,2)}, {v(p,2)}" for p, x, y in zip(regs(d), regs(a), regs(b))]

    def pk_mul(d, a, b):
        return [f"v_pk_mul_f32 {v(p,2)}, {v(x,2)}, {v(y,2)}" for p, x, y in zip(regs(d), regs(a), regs(b))]

    def pk_fmay(d, a, j, neg=False):
        m = " op_sel_hi:[1,0,1]" + (" neg_lo:[0,1,0] neg_hi:[0,1,0]" if neg else "")
        return [f"v_pk_fma_f32 {v(p,2)}, {v(x,2)}, {v(YF+2*(j-1),2)}, {v(p,2)}{m}" for p, x in zip(regs(d), regs(a))]

    def pk_muly(d, a, j, neg=False):
        m = " op_sel_hi:[1,0]" + (" neg_lo:[0,1] neg_hi:[0,1]" if neg else "")
        return [f"v_pk_mul_f32 {v(p,2)}, {v(x,2)}, {v(YF+2*(j-1),2)}{m}" for p, x in zip(regs(d), regs(a))]

    ont = ["", " nt", " sc1", " sc0 sc1", " sc0", " sc1 nt", " sc0 sc1 nt"][opt.b_nt_out]
    OUTR = [blk["C1"][0], blk["C2"][0], blk["C1"][0], blk["C2"][0]]

    def out_store(b):
        for r in range(4):
            e(f"buffer_store_dwordx2 {v(OUTR[b]+2*r,2)}, {v(PQ+r)}, {s(S_OUT,4)}, 0 offen offset:{128 * b}{ont}")

    def weights_dma():
        e.c("output weights into this wave's ring space once its own gathers have drained")
        e(f"s_mul_i32 {s(s_t0)}, {s(s_w)}, 5120")
        e(f"s_add_u32 {s(s_t0)}, {s(s_t0)}, {WSI_OFF}")
        e(f"v_lshl_add_u32 {v(t0)}, {v(vLane)}, 4, {s(s_t0)}")
        e(f"s_mov_b32 m0, {s(s_rbeg)}")
        e("s_waitcnt vmcnt(0) lgkmcnt(0)")
        for i in range(4):
            e(f"buffer_load_dwordx4 {v(t0)}, {s(S_WS,4)}, 0 offen offset:{1024 * i} lds")
        e(f"s_add_u32 m0, {s(s_rbeg)}, 4096")
        e(f"v_add_u32 {v(t0)}, 4096, {v(t0)}")
        e(f"buffer_load_dwordx4 {v(t0)}, {s(S_WS,4)}, 0 offen lds")

    R0, R1, R2 = R, R + 16, R + 32
    slows = []

    def mfma(dst, path):
        return f"v_mfma_f32_32x32x16_bf16 {v(dst,16)}, {v(W+4*path,4)}, {v(AF,4)}, 0"

    def sub_step(ph, mf, y_off, a_off, body, ny, tail):
        e("s_waitcnt lgkmcnt(0)")
        for i in range(8):
            if i % 3 == 0 and i // 3 < len(mf):
                e(mf[i // 3])
            e(f"v_lshlrev_b32 {v(FX+2*i)}, 16, {v(XR+i)}")
            e(f"v_and_b32 {v(FX+2*i+1)}, {s(s_msk)}, {v(XR+i)}")
        d = dma(ph)
        e(d[0])
        later = 2
        if y_off is not None:
            for j in range(3):
                e(f"ds_read_u16_d16_hi {v(YF+2*j)}, {v(aY)} offset:{y_off + 2 * j}")
        if a_off is not None:
            e(f"ds_read_b128 {v(AF,4)}, {v(aA)} offset:{a_off}")
            later += 1
        if y_off is None and a_off is None:
            e("s_nop 0")
        emit(([] if opt.dbg & 1 else d[2:]) + src_next(ph))
        if opt.dbg & 2:
            body = body[:ny] + body[-opt.x_tail:]
        emit(body[:ny])
        if y_off is not None:
            e(f"s_waitcnt lgkmcnt({later})")
        cut = len(body) - opt.x_tail
        emit(body[ny:cut])
        if opt.slow:
            a, b = e.label("slow"), e.label("fast")
            slows.append((a, b))
            e(f"s_cbranch_vccnz {a}")
            e(f"{b}:")
        e("s_waitcnt vmcnt(4)")
        emit(x_read((ph + 1) % 3))
        emit(tail)
        emit(body[cut:])

    def zero(names):
        for b in names:
            for p_ in regs(b):
                e(f"v_mov_b64 {v(p_,2)}, 0")

    def finish(names):
        e.c("finished blocks: round to bf16, then gather this wave's rows in the low four registers")
        for b in names:
            for i, p_ in enumerate(regs(b)):
                e(f"v_cvt_pk_bf16_f32 {v(blk[b][0]+i)}, {v(p_)}, {v(p_+1)}")
        e("s_nop 1")
        for b in names:
            for i in range(4):
                e(f"v_permlane16_swap_b32 {v(blk[b][0]+i)}, {v(blk[b][0]+4+i)}")

    VB = ["S1", "S2", "S3", "D", "C1", "C2", "C3"]
    SB = ["P0", "Q1", "Q2", "Q3"]
    e.c("vector pass: three gathered components share one set of radial products")
    stamp(10)
    if opt.slow:
        e(f"s_cmp_ge_u32 {s(s_tile)}, {opt.slow}")
        e("s_cselect_b64 vcc, -1, 0")
    if opt.nobar == 1:
        e("s_setprio 1")
    if opt.nobar == 3:
        e.c("the wave that is further behind in its sweep issues first")
        e("s_setprio 3")
        e(f"s_mul_i32 {s(s_th)}, {s(s_L)}, 171")
        e(f"s_lshr_b32 {s(s_th+1)}, {s(s_th)}, 9")
        e(f"s_lshr_b32 {s(s_th)}, {s(s_th)}, 8")
    late = opt.r1_late
    prios = []

    def v_step(first):
        fresh = set(VB) if first else set()

        def acc(d, a, b):
            if d in fresh:
                fresh.discard(d)
                return pk_mul(d, a, b)
            return pk_fma(d, a, b)

        def accy(d, a, j, neg=False):
            if d in fresh:
                fresh.discard(d)
                return pk_muly(d, a, j, neg)
            return pk_fmay(d, a, j, neg)

        for ph in range(3):
            m = ph + 1
            nx, pv = m % 3 + 1, (m + 1) % 3 + 1
            body = (acc(f"S{m}", FX, R0) + (pk_muly(DD, FX, m) if ph == 0 else pk_fmay(DD, FX, m)) + pk_mul(FX, FX, R2)
                    + accy(f"C{nx}", FX, pv) + accy(f"C{pv}", FX, nx, True))
            if ph == 2:
                body += acc("D", DD, R1)
            mf = [mfma(R0, 3), mfma(R2, 4)] if ph == 0 else []
            if ph == late:
                mf.append(mfma(R1, 1))
            tail = [f"v_add_u32 {v(aA)}, 1024, {v(aA)}", f"v_add_u32 {v(aY)}, 256, {v(aY)}"] if ph == 2 else []
            if ph == 2 and opt.nobar == 3 and not first:
                for i in range(2):
                    a_, b_ = e.label("prio"), e.label("pback")
                    prios.append((a_, b_, 2 - i))
                    tail += [f"s_cmp_eq_u32 {s(s_cnt)}, {s(s_th+i)}", f"s_cbranch_scc1 {a_}", f"{b_}:"]
            sub_step(ph, mf, 0 if ph == 0 else None, 1024 if ph == late else None, body, 8, tail)
        e(f"s_sub_u32 {s(s_cnt)}, {s(s_cnt)}, 1")

    if opt.peel:
        v_step(True)
        e("s_cbranch_scc1 LB_vec_end")
    else:
        zero(VB)
    e("LB_vec:")
    v_step(False)
    e("s_cbranch_scc0 LB_vec")
    e("LB_vec_end:")
    pass_setup()
    finish(VB)
    stamp(15)
    if not opt.nobar:
        e("s_barrier")
    if opt.nobar in (1, 3):
        e("s_setprio 0")
    e.c("scalar pass")
    stamp(8)

    def s_step(ph, first):
        f1, f2 = (pk_mul, pk_muly) if first else (pk_fma, pk_fmay)
        body = f1("P0", FX, R0) + pk_mul(FX, FX, R1) + f2("Q1", FX, 1) + f2("Q2", FX, 2) + f2("Q3", FX, 3)
        tail = [f"v_add_u32 {v(aA)}, 3072, {v(aA)}", f"v_add_u32 {v(aY)}, 768, {v(aY)}"] if ph == 2 else []
        sub_step(ph, [mfma(R0, 0), mfma(R1, 2)], 256 * ph, 1024 * (ph + 1), body, 16, tail)
        e(f"s_sub_u32 {s(s_cnt)}, {s(s_cnt)}, 1")

    if opt.peel:
        s_step(0, True)
        e("s_cbranch_scc0 LB_scal1")
        e("s_branch LB_scal_end")
    else:
        zero(SB)
    e("LB_scal:")
    for ph in range(3):
        if ph == 1:
            e("LB_scal1:")
        s_step(ph, False)
        e("s_cbranch_scc1 LB_scal_end" if ph < 2 else "s_cbranch_scc0 LB_scal")
    e("LB_scal_end:")
    weights_dma()
    finish(SB)
    stamp(9)

    e("LB_epi:")
    order = ["P0", "D", "Q1", "Q2", "Q3", "S1", "S2", "S3", "C1", "C2", "C3"]
    WB = [XR, XR + 4, AF, WX, DD + 8, DD + 12]
    aW0, aW1, aSw, aSx = aA, aY, t0, t1

    def K(b, nu, r=0):
        return R + 16 * b + 4 * nu + r

    e(f"s_mul_i32 {s(s_t0)}, {s(s_chi)}, {4 * RING_W}")
    e(f"v_lshl_add_u32 {v(aW0)}, {v(vLane)}, 4, {s(s_t0)}")
    e(f"s_sub_u32 {s(s_t0)}, {4 * RING_W}, {s(s_t0)}")
    e(f"v_lshl_add_u32 {v(aW1)}, {v(vLane)}, 4, {s(s_t0)}")
    e(f"s_mul_i32 {s(s_t0)}, {s(s_w)}, 10240")
    e(f"s_add_u32 {s(s_t0)}, {s(s_t0)}, {L_A}")
    e(f"v_lshl_add_u32 {v(aSw)}, {v(vLane)}, 4, {s(s_t0)}")
    e(f"s_lshl_b32 {s(s_t0)}, {s(s_w)}, 10")
    e(f"s_add_u32 {s(s_t0)}, {s(s_t0)}, {L_XTRA}")
    e(f"v_lshl_add_u32 {v(aSx)}, {v(vLane)}, 4, {s(s_t0)}")
    e.c("output mode of this round: bit 0 first job, bit 1 last job, bit 2 idle")
    e(f"s_cmp_eq_u32 {s(s_rho)}, 0")
    e(f"s_cselect_b32 {s(s_t0)}, {s(s_act)}, {s(s_act+1)}")
    e(f"s_cselect_b32 {s(s_mode)}, {s(s_first)}, {s(s_first+1)}")
    e(f"s_cselect_b32 {s(s_t1)}, {s(s_r0)}, {s(s_r0+1)}")
    e(f"s_cselect_b32 {s(s_t2)}, {s(s_J)}, {s(s_J+1)}")
    e(f"s_cselect_b32 {s(s_t3)}, {s(s_tot)}, {s(s_tot+1)}")
    e(f"s_and_b32 {s(s_mode)}, {s(s_mode)}, 1")
    e(f"s_andn2_b32 {s(s_t0)}, 4, {s(s_t0)}")
    e(f"s_or_b32 {s(s_mode)}, {s(s_mode)}, {s(s_t0)}")
    e(f"s_add_u32 {s(s_t1)}, {s(s_t1)}, {s(s_t2)}")
    e(f"s_cmp_eq_u32 {s(s_t1)}, {s(s_t3)}")
    e(f"s_cselect_b32 {s(s_t0)}, 2, 0")
    e(f"s_or_b32 {s(s_mode)}, {s(s_mode)}, {s(s_t0)}")
    e(f"s_cmp_lg_u32 {s(s_rho)}, 0")
    e("s_cbranch_scc1 LB_noa")
    e.c("attribute rows of the second bucket, in record order")
    for k in range(4):
        e(f"v_cmp_le_i32 {s(s_m+8+2*k,2)}, 0, {v(PQ+k)}")
        e(f"v_and_b32 {v(t2)}, 0xfffff, {v(PQ+k)}")
        e(f"v_lshlrev_b32 {v(t2)}, 5, {v(t2)}")
        e(f"v_lshrrev_b32 {v(PQ+k)}, 20, {v(PQ+k)}")
        if k == 3:
            e(f"s_cmp_eq_u64 {s(s_m+14,2)}, 0")
            e("s_cbranch_scc1 LB_a3")
        e(f"buffer_load_dwordx4 {v(F+8*k,4)}, {v(t2)}, {s(S_A,4)}, 0 offen{ant}")
        e(f"buffer_load_dwordx4 {v(F+8*k+4,4)}, {v(t2)}, {s(S_A,4)}, 0 offen offset:16{ant}")
    e("LB_a3:")
    round_params(1)
    e("s_waitcnt vmcnt(6)")
    e("s_branch LB_b1")
    e("LB_noa:")
    e("s_waitcnt vmcnt(0)")
    e("LB_b1:")
    e("s_barrier")
    stamp(16)
    ds = DsTrack(e)

    seq = (list(range(8, 20)) + list(range(8)) if opt.ord3 else list(range(20))) + list(range(20))

    def wread(n):
        if n < 40:
            f = seq[n]
            ds.op(f"ds_read_b128 {v(WB[n % 6],4)}, {v(aW0 if n < 20 else aW1)} offset:{(f // 5) * RING_W + (f % 5) * 1024}", ("w", n))

    def swap_io(i, write):
        reg = v(blk[order[i]][0] + 4, 4)
        ad_, off = (aSw, 1024 * i) if i < 10 else (aSx, 0)
        if write:
            ds.op(f"ds_write_b128 {v(ad_)}, {reg} offset:{off}", ("sw", i))
        else:
            ds.op(f"ds_read_b128 {reg}, {v(ad_)} offset:{off}", ("sr", order[i]))

    def frag(n):
        ph, f = n // 20, seq[n]
        mu, nu = f >> 2, f & 3
        users = [(0, order[mu])] if mu < 2 else [(j, order[3 * mu - 5 + j]) for j in (1, 2, 3)]
        ds.need(("w", n), *([("sr", nm) for _, nm in users] if ph else []))
        for b, nm in users:
            c = "0" if ph == 0 and mu in (0, 2) else v(K(b, nu), 4)
            e(f"v_mfma_f32_16x16x32_bf16 {v(K(b,nu),4)}, {v(blk[nm][0]+4*ph,4)}, {v(WB[n % 6],4)}, {c}")
        wread(n + 6)

    for n in range(6):
        wread(n)
    nb = opt.b2_at
    for n in range(nb):
        frag(n)
        if n < 11:
            swap_io(n, True)
    e(f"s_lshl_b32 {s(s_t0)}, {s(s_chi)}, 1")
    e(f"s_sub_u32 {s(s_t0)}, 1, {s(s_t0)}")
    e(f"s_mul_i32 {s(s_t1)}, {s(s_t0)}, 10240")
    e(f"s_lshl_b32 {s(s_t0)}, {s(s_t0)}, 10")
    e(f"v_add_u32 {v(aSw)}, {s(s_t1)}, {v(aSw)}")
    e(f"v_add_u32 {v(aSx)}, {s(s_t0)}, {v(aSx)}")
    ds.need(("sw", 10))
    e("s_barrier")
    stamp(17)
    pend = list(range(11))
    for i in range(6):
        swap_io(pend.pop(0), False)
    for n in range(nb, 20):
        frag(n)
        if pend:
            swap_io(pend.pop(0), False)
    while pend:
        swap_io(pend.pop(0), False)
    NODE = blk["P0"][0]
    e(f"s_lshl_b32 {s(s_t0)}, {s(s_rho)}, 9")
    e(f"s_lshl_b32 {s(s_t1)}, {s(s_tile)}, 7")
    e(f"s_add_u32 {s(s_t0)}, {s(s_t0)}, {s(s_t1)}")
    e(f"s_lshl_b32 {s(s_t1)}, {s(s_chi)}, 6")
    e(f"s_add_u32 {s(s_t0)}, {s(s_t0)}, {s(s_t1)}")
    e(f"s_add_u32 {s(s_t0)}, {s(s_t0)}, {L_SLOTN}")
    e(f"v_and_b32 {v(t0)}, 0x30, {v(vLane)}")
    e(f"v_add_u32 {v(t0)}, {s(s_t0)}, {v(t0)}")
    ds.op(f"ds_read_b128 {v(NODE,4)}, {v(t0)}", "node")
    ZR = blk["D"][0]
    e(f"v_and_b32 {v(ZR)}, 0x1fc, v0")
    e(f"v_add_u32 {v(ZR)}, {L_SLEN + 512}, {v(ZR)}")
    ds.op(f"ds_read_b32 {v(ZR)}, {v(ZR)}", "slen")
    for n in range(20, 28):
        frag(n)
    ds.need(("sr", "C3"), "node", "slen")
    e(f"v_mov_b32 {v(t0)}, {hex(SPLITMARK)}")
    for k in range(2):
        e(f"v_cmp_eq_u32 {s(s_m+2*k,2)}, {v(NODE+2*k+1)}, {v(t0)}")
    e(f"v_and_b32 {v(t0)}, 15, {v(vLane)}")
    e(f"v_lshlrev_b32 {v(t0)}, 3, {v(t0)}")
    for n in range(28, 40):
        frag(n)
    stamp(18)
    e(f"s_cmp_lg_u32 {s(s_rho)}, 0")
    e("s_cbranch_scc1 LB_post")
    e.c("first bucket: every wave is done with the exchange area and the weights; set up the second bucket")
    e("s_barrier")
    stamp(23)
    prime(0, opt.mid_split)
    stamp(24)
    e(f"s_waitcnt vmcnt({2 * opt.mid_split})")
    for i, g_ in enumerate(a_commit(lambda k: PQ + k, lambda k: s(s_m + 8 + 2 * k, 2), t2)):
        if i == 6:
            e(f"s_cmp_eq_u64 {s(s_m+14,2)}, 0")
            e("s_cbranch_scc1 LB_c3")
        emit(g_)
    e("LB_c3:")
    a_zero(ZR, ZR + 1, ZR + 2, blk["Q1"][0])
    if opt.mid_split < 3:
        prime(opt.mid_split, 3)
    stamp(20)
    if opt.b5_early:
        e("s_waitcnt lgkmcnt(0)")
        e("s_barrier")
    e("LB_post:")
    e("s_nop 7")
    e.c("fold the second half of a split node into the first")
    e(f"s_or_b64 {s(s_ex,2)}, {s(s_m,2)}, {s(s_m+2,2)}")
    e("s_cbranch_scc0 LB_nofold")
    for k in range(2):
        e(f"s_mov_b64 exec, {s(s_m+2*k,2)}")
        for b in range(4):
            for nu in range(4):
                e(f"v_add_f32 {v(K(b,nu,2*k))}, {v(K(b,nu,2*k))}, {v(K(b,nu,2*k+1))}")
    e("s_mov_b64 exec, -1")
    e("LB_nofold:")
    e(f"s_cmp_lg_u32 {s(s_mode)}, 3")
    e("s_cbranch_scc1 LB_multi")
    e("LB_gate:")
    G = blk["S1"][0]
    O = blk["C3"][0]
    for r in range(4):
        e(f"v_add_u32 {v(PQ+r)}, {v(NODE+r)}, {v(t0)}")
    e(f"s_mov_b32 {s(s_t0)}, 0xbfb8aa3b")
    for i in range(16):
        e(f"v_mul_f32 {v(G+i)}, {s(s_t0)}, {v(K(0,0)+i)}")

    def out_pack(b):
        o = OUTR[b]
        for r in range(4):
            e(f"v_cvt_pk_bf16_f32 {v(o+2*r)}, {v(K(b,0,r))}, {v(K(b,1,r))}")
            e(f"v_cvt_pk_bf16_f32 {v(o+2*r+1)}, {v(K(b,2,r))}, {v(K(b,3,r))}")

    stamp(25)
    out_pack(0)
    out_store(0)
    stamp(26)
    for i in range(16):
        e(f"v_exp_f32 {v(G+i)}, {v(G+i)}")
    for i in range(16):
        e(f"v_add_f32 {v(G+i)}, 1.0, {v(G+i)}")
    for i in range(16):
        e(f"v_rcp_f32 {v(G+i)}, {v(G+i)}")
    stamp(27)
    for b in (1, 2, 3):
        for i in range(8):
            d = K(b, 0) + 2 * i
            e(f"v_pk_mul_f32 {v(d,2)}, {v(d,2)}, {v(G+2*i,2)}")
        out_pack(b)
        out_store(b)
    e("LB_round_end:")
    stamp(19)
    stamp_flush()
    e(f"s_cmp_lg_u32 {s(s_rho)}, 0")
    e("s_cbranch_scc1 LB_jobdone")
    e(f"s_mov_b32 {s(s_rho)}, 1")
    if opt.b5_early:
        e("s_waitcnt vmcnt(20)")
    else:
        e("s_waitcnt vmcnt(20) lgkmcnt(0)")
        e("s_barrier")
    e("s_branch LB_round")

    e("LB_jobdone:")
    for h in range(2):
        e(f"s_add_u32 {s(s_r0+h)}, {s(s_r0+h)}, {s(s_J+h)}")
        e(f"s_cmp_lg_u32 {s(s_r0+h)}, {s(s_tot+h)}")
        e(f"s_cselect_b32 {s(s_act+h)}, -1, 0")
    e(f"s_mov_b64 {s(s_first,2)}, 0")
    e(f"s_or_b32 {s(s_t0)}, {s(s_act)}, {s(s_act+1)}")
    e("s_cbranch_scc0 LB_end")
    e("s_branch LB_again")
    e("LB_shrink:")
    for h in range(2):
        e(f"s_add_u32 {s(s_t0)}, {s(s_J+h)}, 1")
        e(f"s_lshr_b32 {s(s_t0)}, {s(s_t0)}, 1")
        e(f"s_cmp_gt_u32 {s(s_TL+4*h+3)}, {SC}")
        e(f"s_cselect_b32 {s(s_cap+h)}, {s(s_t0)}, {s(s_cap+h)}")
    e("LB_again:")
    e("s_waitcnt vmcnt(0) lgkmcnt(0)")
    e("s_barrier")
    e("s_branch LB_job")

    e("LB_multi:")
    e.c("bucket processed in several jobs: carry the ungated sums through the workspace")
    PO = O
    e("s_waitcnt vmcnt(0)")
    e(f"s_bitcmp1_b32 {s(s_mode)}, 2")
    e("s_cbranch_scc1 LB_round_end")
    e(f"v_mov_b32 {v(t1)}, {hex(X_BYTES)}")
    e(f"v_lshrrev_b32 {v(t2)}, 1, {v(t0)}")
    for r in range(4):
        e(f"v_min_u32 {v(PO+r)}, {v(NODE+r)}, {v(t1)}")
        e(f"v_lshl_add_u32 {v(PO+r)}, {v(PO+r)}, 1, {v(t2)}")
    e(f"s_bitcmp1_b32 {s(s_mode)}, 0")
    e("s_cbranch_scc1 LB_multi_st")
    for b in range(4):
        for nu in range(4):
            for r in range(4):
                e(f"buffer_load_dword {v(G+4*nu+r)}, {v(PO+r)}, {s(S_PART,4)}, 0 offen offset:{(b*4+nu)*64} sc1")
        e("s_waitcnt vmcnt(0)")
        for i in range(16):
            e(f"v_add_f32 {v(K(b,0)+i)}, {v(K(b,0)+i)}, {v(G+i)}")
    e(f"s_bitcmp1_b32 {s(s_mode)}, 1")
    e("s_cbranch_scc1 LB_gate")
    e("LB_multi_st:")
    for b in range(4):
        for nu in range(4):
            for r in range(4):
                e(f"buffer_store_dword {v(K(b,nu,r))}, {v(PO+r)}, {s(S_PART,4)}, 0 offen offset:{(b*4+nu)*64}")
        e("s_waitcnt vmcnt(0)")
    e("s_branch LB_round_end")

    for a, b in wraps:
        e(f"{a}:")
        e.c("first event: switch the prefetch to the scalar component; second event: park it on the empty row")
        e(f"s_lshl_b32 {s(s_off)}, {s(s_chi)}, 6")
        e(f"s_mov_b32 {s(s_off+1)}, {s(s_off)}")
        e(f"s_mov_b32 {s(s_off+2)}, {s(s_off)}")
        e(f"s_sub_u32 {s(s_pcnt)}, {s(s_L)}, 1")
        e(f"s_xor_b32 {s(s_incA)}, {s(s_incA)}, 256")
        e(f"s_cselect_b32 {s(s_t3)}, {s(s_mbeg)}, {L_INV}")
        e(f"s_cselect_b32 {s(s_pcnt)}, {s(s_pcnt)}, -1")
        e(f"s_mov_b32 {s(s_incB)}, {s(s_incA)}")
        e(f"v_add_u32 {v(aS)}, {s(s_t3)}, {v(cS)}")
        e(f"s_branch {b}")
    for a, b, pr in prios:
        e(f"{a}:")
        e(f"s_setprio {pr}")
        e(f"s_branch {b}")
    for a, b in slows:
        e(f"{a}:")
        e("s_waitcnt vmcnt(2)")
        e(f"s_branch {b}")
    e("LB_end:")
    e("s_endpgm")
    return dict(vgpr=256 if opt.prof else va.p, sgpr=102 if opt.prof else sa.p)
```

```python
from asmlib import *
from common import *

B_THREADS = 512
SC = 64
JMAX = 2048
NSPLIT = 128 - NPB
RING_W = 3 * 2048
L_RING = 0
L_A = 8 * RING_W
L_META0 = L_A + SC * 1024
MS = SC * 256
L_INV = L_META0 + 2 * MS
L_SLOTN = L_INV + 256
L_SLEN = L_SLOTN + 1024
L_XTRA = L_SLEN + 1024
L_END = L_XTRA + 8192
assert SC * 1280 >= 81920 and L_END <= 163840
T_CNT, T_H1, T_H2, T_TL, T_SORT, T_INFO, T_PRE, TB = 0, 4096, 4352, 4608, 4672, 5248, 5760, 9856
L_WSUM = 2 * TB
L_POS = 20480
PAT = 0xC4000000
SPLITMARK = 0x7F000000


def lds_bytes(opt):
    return L_END


class DsTrack:
    def __init__(self, e):
        self.e, self.n, self.at, self.done = e, 0, {}, 0

    def op(self, text, tag=None):
        self.e(text)
        self.n += 1
        if tag is not None:
            self.at[tag] = self.n

    def need(self, *tags):
        last = max(self.at[t] for t in tags)
        if last > self.done:
            self.e(f"s_waitcnt lgkmcnt({min(self.n - last, 15)})")
            self.done = last


def gen(e, opt):
    sa = Alloc(3, 100)
    s_t0 = sa()
    S_X, S_A, S_WS, S_OUT, S_PART, S_XR = (sa(4, 4) for _ in range(6))
    P = sa(8, 4)
    s_m = sa(16, 2)
    s_ex = P + 6
    s_w, s_chi, s_tile, s_rp = sa(), sa(), sa(), sa()
    s_tot, s_r0, s_J, s_cap, s_act, s_first = (sa(2, 2) for _ in range(6))
    s_TL = sa(8, 4)
    s_mybk, s_tb = sa(), sa()
    s_rho, s_mbeg, s_abeg = sa(), sa(), sa()
    s_pcnt, s_incA, s_incB = sa(), sa(), sa()
    s_off = sa(3)
    s_th = sa(2)
    s_cnt, s_L, s_rbeg = sa(), sa(), sa()
    s_mode, s_msk, s_t1, s_t2, s_t3 = (sa() for _ in range(5))

    va = Alloc(1, 254 if opt.prof else 256)
    vLane = va()
    PV = va(56, 2)
    PS = va(32, 2)
    F = va(24, 2)
    DD = va(16, 2)
    R = va(48, 2)
    FX = va(16, 2)
    XR = va(8, 2)
    AF = va(4, 2)
    W = va(20, 2)
    YF = va(6, 2)
    cA, cY, cS = YF + 1, YF + 3, YF + 5
    SRC0, SRC1 = va(2, 2), va(2, 2)
    cD0, cD1 = SRC0 + 1, SRC1 + 1
    cX0, cX1, aA, aY, aS = (va() for _ in range(5))
    t0, t1, t2 = va(), va(), va()
    PQ = va(4)
    WX = va(4, 2)

    blk = {nm: (PV + 8 * i, PS + 8 * i) for i, nm in enumerate(["S1", "S2", "S3", "D", "C1", "C2", "C3"])}
    blk.update({nm: (PS + 8 * i, F + 8 * i) for i, nm in enumerate(["P0", "Q1", "Q2", "Q3"])})

    def pair(name, i):
        return blk[name][i // 4] + 2 * (i % 4)

    def stamp(i):
        if opt.prof == 1 or (opt.prof == 2 and i in (0, 7, 9, 15, 19)) or (opt.prof in (3, 5) and i in (0, 1, 2, 3, 4, 5, 6, 7, 19)) or (opt.prof == 4 and i in (0, 9, 16, 17, 23, 7, 15, 19)):
            e("s_memtime s[100:101]")
            e("s_waitcnt lgkmcnt(0)")
            e(f"v_writelane_b32 v254, s100, {i}")
            e("s_memrealtime s[100:101]")
            e("s_waitcnt lgkmcnt(0)")
            e(f"v_writelane_b32 v254, s100, {32 + i}")

    def xstamp(i):
        if opt.prof == 5:
            opt.prof = 1
            stamp(i)
            opt.prof = 5

    def stamp_flush():
        if opt.prof:
            e("s_memrealtime s[100:101]")
            e("s_waitcnt lgkmcnt(0)")
            e("v_writelane_b32 v254, s100, 31")
            e(f"s_lshl_b32 s100, s2, 4")
            e(f"s_lshl_b32 s101, {s(s_w)}, 1")
            e("s_add_u32 s100, s100, s101")
            e(f"s_add_u32 s100, s100, {s(s_rho)}")
            e("s_lshl_b32 s100, s100, 8")
            e(f"s_add_u32 s100, s100, {PROF_OFF}")
            e(f"v_lshl_add_u32 v255, {v(vLane)}, 2, s100")
            e(f"buffer_store_dword v254, v255, {s(S_WS,4)}, 0 offen")

    def emit(lst):
        for ln_ in lst:
            e(ln_ if ln_ else "s_nop 0")

    pa = Alloc(PV, PV + 88)
    vRec = pa(32, 2)
    vPos = pa(8)
    vRank = pa(8)
    vU, vEnt, vCnt, vScan, vG, vOne = (pa() for _ in range(6))
    vPat = pa(4, 2)
    q = [pa() for _ in range(12)]
    q4 = pa(10, 2)

    e(f".p2align 8\n.type {KB},@function\n{KB}:")
    e("s_cmp_ge_u32 s2, 256")
    e("s_cbranch_scc1 LB_end")
    if opt.prof:
        e("v_mov_b32 v254, 0")
        e("s_memrealtime s[100:101]")
        e("s_waitcnt lgkmcnt(0)")
        e("v_writelane_b32 v254, s100, 30")
    stamp(0)
    e(f"s_load_dwordx2 {s(P,2)}, s[0:1], 0")
    e(f"s_load_dwordx2 {s(P+2,2)}, s[0:1], 72")
    e(f"s_load_dwordx2 {s(P+4,2)}, s[0:1], 88")
    e(f"v_lshrrev_b32 {v(t0)}, 6, v0")
    e(f"v_and_b32 {v(vLane)}, 63, v0")
    e(f"v_readfirstlane_b32 {s(s_w)}, {v(t0)}")
    e(f"s_and_b32 {s(s_t0)}, s2, 7")
    e(f"s_lshl_b32 {s(s_t0)}, {s(s_t0)}, 5")
    e(f"s_lshr_b32 {s(s_t1)}, s2, 3")
    e(f"s_add_u32 {s(s_t0)}, {s(s_t0)}, {s(s_t1)}")
    e(f"s_and_b32 {s(s_chi)}, {s(s_w)}, 1")
    e(f"s_lshr_b32 {s(s_rp)}, {s(s_w)}, 2")
    e(f"s_lshr_b32 {s(s_tile)}, {s(s_w)}, 1")
    e(f"s_xor_b32 {s(s_tile)}, {s(s_tile)}, {s(s_rp)}")
    e(f"s_lshl_b32 {s(s_mybk)}, {s(s_rp)}, 8")
    e(f"s_add_u32 {s(s_mybk)}, {s(s_mybk)}, {s(s_t0)}")
    e(f"s_mul_i32 {s(s_tb)}, {s(s_rp)}, {TB}")
    e(f"s_mov_b64 {s(s_r0,2)}, 0")
    e(f"s_movk_i32 {s(s_cap)}, {JMAX}")
    e(f"s_movk_i32 {s(s_cap+1)}, {JMAX}")
    e(f"s_mov_b64 {s(s_act,2)}, -1")
    e(f"s_mov_b64 {s(s_first,2)}, -1")
    e(f"s_mov_b32 {s(s_msk)}, 0xffff0000")
    e(f"s_mul_i32 {s(s_rbeg)}, {s(s_w)}, {RING_W}")
    e("s_waitcnt lgkmcnt(0)")
    if opt.ws_shift:
        e(f"s_add_u32 {s(P+4)}, {s(P+4)}, {hex(opt.ws_shift)}")
        e(f"s_addc_u32 {s(P+5)}, {s(P+5)}, 0")
    srd(e, S_WS, P + 4, WS_BYTES - opt.ws_shift)
    e.c("x as rows of 512 bytes; the base sits 1 KiB low and every access adds that back")
    e(f"s_sub_u32 {s(S_X)}, {s(P)}, 1024")
    e(f"s_subb_u32 {s(S_X+1)}, {s(P+1)}, 0")
    e(f"s_or_b32 {s(S_X+1)}, {s(S_X+1)}, 0x02000000")
    e(f"s_mov_b32 {s(S_X+2)}, {N}")
    e(f"s_mov_b32 {s(S_X+3)}, 0x00020000")
    srd(e, S_XR, P, X_BYTES)
    srd(e, S_A, P + 4, A_BYTES, APAY_OFF)
    srd(e, S_OUT, P + 2, X_BYTES)
    srd(e, S_PART, P + 4, N * 1024, PART_OFF)

    e("LB_job:")
    if opt.pf:
        e.c("extent of this die's share of one chunk, for the cache warm-up below")
        e(f"s_andn2_b32 {s(s_t2)}, s2, 7")
        e(f"s_add_u32 {s(s_t2)}, {s(s_t2)}, {s(s_w)}")
        e(f"s_min_u32 {s(s_t2)}, {s(s_t2)}, {NCH - 1}")
        e(f"s_lshl_b32 {s(s_t0)}, {s(s_t2)}, 11")
        e(f"s_and_b32 {s(s_t1)}, s2, 7")
        e(f"s_lshl_b32 {s(s_t1)}, {s(s_t1)}, 7")
        e(f"s_add_u32 {s(s_t0)}, {s(s_t0)}, {s(s_t1)}")
        e(f"s_add_u32 {s(P)}, {s(S_WS)}, {s(s_t0)}")
        e(f"s_addc_u32 {s(P+1)}, {s(S_WS+1)}, 0")
        for i, off in enumerate((0, 124, 1024, 1148)):
            e(f"s_load_dword {s(s_TL+i)}, {s(P,2)}, {TAB_OFF + off}")
    e(f"v_and_b32 {v(vU)}, 255, v0")
    e(f"s_lshl_b32 {s(s_t0)}, {s(s_mybk)}, 2")
    e(f"s_add_u32 {s(s_t0)}, {s(s_t0)}, {TAB_OFF}")
    e(f"v_lshl_add_u32 {v(q[0])}, {v(vU)}, 11, {s(s_t0)}")
    e(f"v_mov_b32 {v(vEnt)}, 0")
    e(f"v_cmp_gt_u32 vcc, {NCH}, {v(vU)}")
    e("s_mov_b64 exec, vcc")
    e(f"buffer_load_dword {v(vEnt)}, {v(q[0])}, {s(S_WS,4)}, 0 offen")
    e("s_mov_b64 exec, -1")
    e.c("fill the step rows with the empty-slot pattern, clear the counters")
    for k in range(4):
        e(f"v_mov_b32 {v(vPat+k)}, {hex(PAT)}")
    e(f"v_lshlrev_b32 {v(q[0])}, 4, v0")
    e(f"v_add_u32 {v(q[0])}, {L_META0}, {v(q[0])}")
    n16 = (2 * MS + 256) // 16
    for k in range((n16 + 511) // 512):
        rem = n16 - 512 * k
        if rem < 512:
            e(f"v_cmp_gt_u32 vcc, {rem}, v0")
            e("s_mov_b64 exec, vcc")
        e(f"ds_write_b128 {v(q[0])}, {v(vPat,4)} offset:{k * 8192}")
    e("s_mov_b64 exec, -1")
    for k in range(4):
        e(f"v_mov_b32 {v(q4+k)}, 0")
    e(f"v_lshl_add_u32 {v(q[0])}, {v(vU)}, 4, {s(s_tb)}")
    e(f"ds_write_b128 {v(q[0])}, {v(q4,4)}")
    e(f"v_cmp_gt_u32 vcc, 33, {v(vU)}")
    e("s_mov_b64 exec, vcc")
    e(f"ds_write_b128 {v(q[0])}, {v(q4,4)} offset:4096")
    e("s_mov_b64 exec, -1")
    e(f"v_mov_b32 {v(vOne)}, 1")
    e(f"v_mul_u32_u24 {v(vG)}, {CH}, {v(vU)}")

    if opt.pf:
        e(f"s_mul_i32 {s(s_t2)}, {s(s_t2)}, {CH}")
        e(f"v_lshlrev_b32 {v(q[1])}, 7, {v(vLane)}")
        e(f"v_and_b32 {v(q[2])}, 0xf80, {v(q[1])}")
        e(f"v_cmp_lt_u32 vcc, 31, {v(vLane)}")
        e("s_waitcnt lgkmcnt(0)")
        for h in range(2):
            a_, b_ = s_TL + 2 * h, s_TL + 2 * h + 1
            e(f"s_and_b32 {s(a_)}, {s(a_)}, 0xffff")
            e(f"s_add_u32 {s(a_)}, {s(a_)}, {s(s_t2)}")
            e(f"s_lshr_b32 {s(s_t0)}, {s(b_)}, 16")
            e(f"s_and_b32 {s(b_)}, {s(b_)}, 0xffff")
            e(f"s_add_u32 {s(b_)}, {s(b_)}, {s(s_t0)}")
            e(f"s_add_u32 {s(b_)}, {s(b_)}, {s(s_t2)}")
            e(f"s_mul_i32 {s(s_TL+4+2*h)}, {s(a_)}, 12")
            e(f"s_andn2_b32 {s(s_TL+4+2*h)}, {s(s_TL+4+2*h)}, 127")
            e(f"s_mul_i32 {s(s_TL+5+2*h)}, {s(b_)}, 12")
        e(f"v_mov_b32 {v(q[3])}, {s(s_TL+4)}")
        e(f"v_mov_b32 {v(q[4])}, {s(s_TL+6)}")
        e(f"v_mov_b32 {v(q[5])}, {s(s_TL+5)}")
        e(f"v_mov_b32 {v(q[6])}, {s(s_TL+7)}")
        e(f"v_cndmask_b32 {v(q[3])}, {v(q[3])}, {v(q[4])}, vcc")
        e(f"v_cndmask_b32 {v(q[5])}, {v(q[5])}, {v(q[6])}, vcc")
        e(f"v_add_u32 {v(q[3])}, {v(q[3])}, {v(q[2])}")
        e(f"v_cmp_lt_u32 vcc, {v(q[3])}, {v(q[5])}")
        e(f"v_add_u32 {v(q[3])}, {REC_OFF}, {v(q[3])}")
        e(f"v_mov_b32 {v(q[4])}, 0xffffff00")
        e(f"v_cndmask_b32 {v(q[3])}, {v(q[4])}, {v(q[3])}, vcc")
        e(f"buffer_load_dword {v(WX)}, {v(q[3])}, {s(S_WS,4)}, 0 offen")
        e(f"s_lshl_b32 {s(s_TL)}, {s(s_TL)}, 5")
        e(f"s_andn2_b32 {s(s_TL)}, {s(s_TL)}, 127")
        e(f"s_lshl_b32 {s(s_TL+1)}, {s(s_TL+1)}, 5")
        e(f"v_add_u32 {v(WX+2)}, {s(s_TL)}, {v(q[1])}")
        e(f"v_cmp_gt_u32 vcc, {s(s_TL+1)}, {v(WX+2)}")
        e("s_nop 1")
        e(f"v_cndmask_b32 {v(WX+2)}, {v(q[4])}, {v(WX+2)}, vcc")
        if opt.pf == 3:
            e(f"buffer_load_dword {v(WX+1)}, {v(WX+2)}, {s(S_A,4)}, 0 offen")

    e.c("per-lane constants; consumer lane (e, h) serves slot e ^ (16*chi)")
    e(f"s_lshl_b32 {s(s_t0)}, {s(s_chi)}, 4")
    e(f"v_and_b32 {v(t0)}, 31, {v(vLane)}")
    e(f"v_xor_b32 {v(t0)}, {s(s_t0)}, {v(t0)}")
    e(f"v_lshrrev_b32 {v(t1)}, 5, {v(vLane)}")
    e(f"v_lshlrev_b32 {v(cY)}, 3, {v(t0)}")
    e(f"v_bfe_u32 {v(t2)}, {v(t0)}, 3, 1")
    e(f"v_xor_b32 {v(cA)}, {v(t2)}, {v(t1)}")
    e(f"v_lshlrev_b32 {v(cA)}, 4, {v(cA)}")
    e(f"v_lshl_add_u32 {v(cA)}, {v(t0)}, 5, {v(cA)}")
    e(f"v_xor_b32 {v(t2)}, {v(t2)}, {v(t1)}")
    e(f"v_lshlrev_b32 {v(t2)}, 1, {v(t2)}")
    e(f"v_and_b32 {v(cX1)}, 1, {v(t0)}")
    e(f"v_or_b32 {v(t2)}, {v(t2)}, {v(cX1)}")
    e(f"v_lshlrev_b32 {v(t2)}, 4, {v(t2)}")
    e(f"v_lshl_add_u32 {v(t2)}, {v(cX1)}, 10, {v(t2)}")
    e(f"v_lshrrev_b32 {v(cX0)}, 1, {v(t0)}")
    e(f"v_lshl_add_u32 {v(cX0)}, {v(cX0)}, 6, {v(t2)}")
    e(f"v_add_u32 {v(cX0)}, {s(s_rbeg)}, {v(cX0)}")
    e(f"v_xor_b32 {v(cX1)}, 16, {v(cX0)}")
    e(f"v_lshrrev_b32 {v(t0)}, 2, {v(vLane)}")
    e(f"v_lshlrev_b32 {v(cS)}, 4, {v(t0)}")
    e(f"v_bfe_u32 {v(t0)}, {v(vLane)}, 4, 1")
    e(f"v_lshlrev_b32 {v(t0)}, 1, {v(t0)}")
    e(f"v_and_b32 {v(t1)}, 3, {v(vLane)}")
    e(f"v_xor_b32 {v(t0)}, {v(t0)}, {v(t1)}")
    e(f"v_lshlrev_b32 {v(cD0)}, 4, {v(t0)}")
    e(f"v_xor_b32 {v(cD1)}, 16, {v(cD0)}")
    e(f"v_add_u32 {v(cD0)}, 1024, {v(cD0)}")
    e(f"s_lshl_b32 {s(s_t0)}, {s(s_chi)}, 10")
    e(f"s_add_u32 {s(s_t0)}, {s(s_t0)}, {WRAD_OFF}")
    e(f"v_lshl_add_u32 {v(t2)}, {v(vLane)}, 4, {s(s_t0)}")

    e(f"s_waitcnt vmcnt({[0, 1, 1, 2][opt.pf]})")
    stamp(1)
    e(f"v_lshrrev_b32 {v(vCnt)}, 16, {v(vEnt)}")
    e(f"v_and_b32 {v(vEnt)}, 0xffff, {v(vEnt)}")
    e(f"v_mov_b32 {v(vScan)}, {v(vCnt)}")
    e(f"v_add_u32 {v(vG)}, {v(vG)}, {v(vEnt)}")
    wave_incl_scan(e, vScan)
    e(f"s_lshl_b32 {s(s_t0)}, {s(s_w)}, 2")
    e(f"v_mov_b32 {v(q[0])}, {s(s_t0)}")
    e(f"v_cmp_eq_u32 vcc, 63, {v(vLane)}")
    e("s_mov_b64 exec, vcc")
    e(f"ds_write_b32 {v(q[0])}, {v(vScan)} offset:{L_WSUM}")
    e("s_mov_b64 exec, -1")
    e(f"v_sub_u32 {v(vScan)}, {v(vScan)}, {v(vCnt)}")
    e(f"v_mov_b32 {v(q[0])}, 0")
    e("s_waitcnt lgkmcnt(0)")
    e("s_barrier")
    e(f"ds_read_b128 {v(q4,4)}, {v(q[0])} offset:{L_WSUM}")
    e(f"ds_read_b128 {v(q4+4,4)}, {v(q[0])} offset:{L_WSUM + 16}")
    e("s_waitcnt lgkmcnt(0)")
    for k in range(8):
        e(f"v_readfirstlane_b32 {s(s_TL+k)}, {v(q4+k)}")
    e("s_nop 0")
    for h in range(2):
        for k in range(1, 4):
            e(f"s_add_u32 {s(s_TL+4*h+k)}, {s(s_TL+4*h+k)}, {s(s_TL+4*h+k-1)}")
        e(f"s_mov_b32 {s(s_tot+h)}, {s(s_TL+4*h+3)}")
        e(f"s_sub_u32 {s(s_J+h)}, {s(s_tot+h)}, {s(s_r0+h)}")
        e(f"s_min_u32 {s(s_J+h)}, {s(s_J+h)}, {s(s_cap+h)}")
    e(f"s_cmp_eq_u32 {s(s_rp)}, 0")
    e(f"s_cselect_b32 {s(s_t2)}, {s(s_J)}, {s(s_J+1)}")
    e(f"s_cselect_b32 {s(s_t3)}, {s(s_r0)}, {s(s_r0+1)}")
    e(f"s_cselect_b64 {s(s_TL,2)}, {s(s_TL,2)}, {s(s_TL+4,2)}")
    e(f"s_cselect_b32 {s(s_TL+2)}, {s(s_TL+2)}, {s(s_TL+6)}")
    e(f"s_bitcmp1_b32 {s(s_w)}, 0")
    e(f"s_cselect_b32 {s(s_t0)}, {s(s_TL)}, 0")
    e(f"s_cselect_b32 {s(s_t1)}, {s(s_TL+2)}, {s(s_TL+1)}")
    e(f"s_bitcmp1_b32 {s(s_w)}, 1")
    e(f"s_cselect_b32 {s(s_t0)}, {s(s_t1)}, {s(s_t0)}")
    e(f"s_sub_u32 {s(s_t0)}, {s(s_t0)}, {s(s_t3)}")
    e(f"v_add_u32 {v(vScan)}, {s(s_t0)}, {v(vScan)}")
    e.c("list the global positions of the job's records")
    e(f"v_sub_u32 {v(q[0])}, 0, {v(vScan)}")
    e(f"v_max_i32 {v(q[0])}, 0, {v(q[0])}")
    e(f"v_sub_u32 {v(q[1])}, {s(s_t2)}, {v(vScan)}")
    e(f"v_min_i32 {v(q[1])}, {v(q[1])}, {v(vCnt)}")
    e(f"v_sub_u32 {v(q[1])}, {v(q[1])}, {v(q[0])}")
    e(f"v_add_u32 {v(vG)}, {v(vG)}, {v(q[0])}")
    e(f"v_add_u32 {v(q[0])}, {v(q[0])}, {v(vScan)}")
    e(f"s_mul_i32 {s(s_t1)}, {s(s_rp)}, {JMAX * 4}")
    e(f"s_add_u32 {s(s_t1)}, {s(s_t1)}, {L_POS}")
    e(f"v_lshl_add_u32 {v(q[0])}, {v(q[0])}, 2, {s(s_t1)}")
    e("LB_pl:")
    for j in range(4):
        e(f"v_cmpx_lt_i32 vcc, {j}, {v(q[1])}")
        e(f"ds_write_b32 {v(q[0])}, {v(vG)} offset:{4 * j}")
        e(f"v_add_u32 {v(vG)}, 1, {v(vG)}")
    e(f"v_add_u32 {v(q[0])}, 16, {v(q[0])}")
    e(f"v_subrev_u32 {v(q[1])}, 4, {v(q[1])}")
    e("s_cbranch_execnz LB_pl")
    e("s_mov_b64 exec, -1")
    e(f"v_lshlrev_b32 {v(q[0])}, 2, v0")
    for k in range(8):
        if k & 3:
            e(f"v_add_u32 {v(q[1])}, {512 * (k & 3)}, v0")
        e(f"v_cmp_gt_u32 {s(s_m+2*k,2)}, {s(s_J+(k>>2))}, {v(q[1]) if k & 3 else 'v0'}")
    e(f"v_mov_b32 {v(q[2])}, 0xffffff")
    e("s_waitcnt lgkmcnt(0)")
    e("s_barrier")
    stamp(2)
    for k in range(8):
        e(f"ds_read_b32 {v(vPos+k)}, {v(q[0])} offset:{L_POS + 2048 * k}")
    e.c("positions of absent records point past the record and attribute arrays")
    e(f"s_mov_b32 {s(S_WS+2)}, {REC_OFF + E * 12}")
    e(f"s_mov_b32 {s(s_t0)}, {REC_OFF}")
    for k in range(8):
        e(f"s_waitcnt lgkmcnt({7-k})")
        e(f"v_cndmask_b32 {v(vPos+k)}, {v(q[2])}, {v(vPos+k)}, {s(s_m+2*k,2)}")
        e(f"v_mad_u32_u24 {v(q[3+k])}, {v(vPos+k)}, 12, {s(s_t0)}")
        e(f"buffer_load_dwordx3 {v(vRec+4*k,3)}, {v(q[3+k])}, {s(S_WS,4)}, 0 offen")
    e(f"s_mov_b32 {s(S_WS+2)}, {hex(WS_BYTES - opt.ws_shift)}")
    ant = " nt" if opt.b_nt_a else ""

    def a_first():
        for k in range(4):
            e(f"v_lshlrev_b32 {v(vPos+k)}, 5, {v(vPos+k)}")
            e(f"buffer_load_dwordx4 {v(F+8*k,4)}, {v(vPos+k)}, {s(S_A,4)}, 0 offen{ant}")
            e(f"buffer_load_dwordx4 {v(F+8*k+4,4)}, {v(vPos+k)}, {s(S_A,4)}, 0 offen offset:16{ant}")

    def w_load():
        for p in range(5):
            e(f"buffer_load_dwordx4 {v(W+4*p,4)}, {v(t2)}, {s(S_WS,4)}, 0 offen" + (" offset:2048" if p & 1 else ""))
            if p & 1:
                e(f"v_add_u32 {v(t2)}, 4096, {v(t2)}")

    if opt.a_early == 1:
        e("s_barrier")
        a_first()
    if opt.pf == 2 and opt.pf_at < 0:
        e("s_barrier")
        e(f"buffer_load_dword {v(WX+1)}, {v(WX+2)}, {s(S_A,4)}, 0 offen")
    xstamp(20)
    if opt.prof == 5:
        e("s_waitcnt vmcnt(7)")
        xstamp(21)
        e("s_waitcnt vmcnt(0)")
        xstamp(22)
    e.c("rank of every record inside its node")
    for k in range(8):
        e(f"s_waitcnt vmcnt({(15 if opt.a_early == 1 else 7) + (opt.pf == 2 and k > opt.pf_at) - k})")
        if opt.pf == 2 and k == opt.pf_at:
            e(f"buffer_load_dword {v(WX+1)}, {v(WX+2)}, {s(S_A,4)}, 0 offen")
        e(f"v_lshrrev_b32 {v(vRec+4*k+2)}, 18, {v(vRec+4*k+2)}")
        e(f"v_and_b32 {v(vRec+4*k+2)}, 0x1fc, {v(vRec+4*k+2)}")
        e(f"v_lshrrev_b32 {v(vRec+4*k+3)}, {29 if opt.bins else 31}, {v(vRec+4*k+1) if opt.bins else v(vOne)}")
        e(f"v_lshl_add_u32 {v(vRec+4*k+3)}, {v(vRec+4*k+2)}, 1, {v(vRec+4*k+3)}")
        e(f"v_lshlrev_b32 {v(vRec+4*k+3)}, 2, {v(vRec+4*k+3)}")
        e(f"s_mov_b64 exec, {s(s_m+2*k,2)}")
        e(f"ds_add_rtn_u32 {v(vRank+k)}, {v(vRec+4*k+3)}, {v(vOne)} offset:{T_CNT + TB * (k >> 2)}")
        e("s_mov_b64 exec, -1")
    e("s_waitcnt lgkmcnt(0)")
    xstamp(23)
    e("s_barrier")
    stamp(3)

    e.c("waves 0 and 4: order the nodes by degree, split the largest, lay out the tiles")
    e(f"s_and_b32 {s(s_t0)}, {s(s_w)}, 3")
    e(f"s_cmp_lg_u32 {s(s_t0)}, 0")
    e("s_cbranch_scc1 LB_idle")
    d0, d1, k0, k1, o0, o1, ad, hv, hs, ln, jj, sp = q
    e(f"v_lshl_add_u32 {v(ad)}, {v(vLane)}, 2, {s(s_tb)}")
    e(f"v_lshl_add_u32 {v(hv)}, {v(vLane)}, 5, {s(s_tb)}")
    for i in range(4):
        e(f"ds_read_b128 {v(R+4*i,4)}, {v(hv)} offset:{T_CNT + 2048 * (i >> 1) + 16 * (i & 1)}")
    e(f"v_cmp_gt_u32 {s(s_ex,2)}, {NPB - 64}, {v(vLane)}")
    for i, d in enumerate((d0, d1)):
        e(f"s_waitcnt lgkmcnt({2 - 2 * i})")
        e(f"v_add3_u32 {v(d)}, {v(R+8*i)}, {v(R+8*i+1)}, {v(R+8*i+2)}")
        e(f"v_add3_u32 {v(d)}, {v(d)}, {v(R+8*i+3)}, {v(R+8*i+4)}")
        e(f"v_add3_u32 {v(d)}, {v(d)}, {v(R+8*i+5)}, {v(R+8*i+6)}")
        e(f"v_add_u32 {v(d)}, {v(d)}, {v(R+8*i+7)}")
    for d, k in ((d0, k0), (d1, k1)):
        e(f"v_min_u32 {v(k)}, 63, {v(d)}")
        e(f"v_sub_u32 {v(k)}, 63, {v(k)}")
        e(f"v_lshlrev_b32 {v(k)}, 2, {v(k)}")
    e(f"v_add_u32 {v(hv)}, {s(s_tb)}, {v(k0)}")
    e(f"v_add_u32 {v(hs)}, {s(s_tb)}, {v(k1)}")
    e(f"ds_add_rtn_u32 {v(o0)}, {v(hv)}, {v(vOne)} offset:{T_H1}")
    e(f"s_mov_b64 exec, {s(s_ex,2)}")
    e(f"ds_add_rtn_u32 {v(o1)}, {v(hs)}, {v(vOne)} offset:{T_H1}")
    e("s_mov_b64 exec, -1")
    e(f"ds_read_b32 {v(hv)}, {v(ad)} offset:{T_H1}")
    e(f"v_lshl_or_b32 {v(d0)}, {v(d0)}, 8, {v(vLane)}")
    e(f"v_lshl_or_b32 {v(d1)}, {v(d1)}, 8, {v(vLane)}")
    e(f"v_or_b32 {v(d1)}, 64, {v(d1)}")
    e("s_waitcnt lgkmcnt(0)")
    e(f"v_mov_b32 {v(hs)}, {v(hv)}")
    wave_incl_scan(e, hs)
    e(f"v_sub_u32 {v(hs)}, {v(hs)}, {v(hv)}")
    e(f"ds_bpermute_b32 {v(k0)}, {v(k0)}, {v(hs)}")
    e(f"ds_bpermute_b32 {v(k1)}, {v(k1)}, {v(hs)}")
    e(f"v_cmp_gt_u32 vcc, {NSPLIT}, {v(vLane)}")
    e(f"v_lshlrev_b32 {v(jj)}, 1, {v(vLane)}")
    e(f"v_subrev_u32 {v(jj)}, {NSPLIT}, {v(jj)}")
    e(f"v_cndmask_b32 {v(jj)}, {v(jj)}, {v(vLane)}, vcc")
    e(f"v_cndmask_b32 {v(sp)}, 0, {v(vOne)}, vcc")
    e(f"v_lshl_add_u32 {v(jj)}, {v(jj)}, 2, {s(s_tb)}")
    e(f"v_add_u32 {v(jj)}, {T_SORT}, {v(jj)}")
    e("s_waitcnt lgkmcnt(0)")
    e(f"v_add_u32 {v(k0)}, {v(k0)}, {v(o0)}")
    e(f"v_add_u32 {v(k1)}, {v(k1)}, {v(o1)}")
    e(f"v_lshl_add_u32 {v(k0)}, {v(k0)}, 2, {s(s_tb)}")
    e(f"v_lshl_add_u32 {v(k1)}, {v(k1)}, 2, {s(s_tb)}")
    e(f"ds_write_b32 {v(k0)}, {v(d0)} offset:{T_SORT}")
    e(f"s_mov_b64 exec, {s(s_ex,2)}")
    e(f"ds_write_b32 {v(k1)}, {v(d1)} offset:{T_SORT}")
    e("s_mov_b64 exec, -1")
    e(f"ds_read2_b32 {v(q4,2)}, {v(jj)} offset0:0 offset1:1")
    e("s_waitcnt lgkmcnt(0)")
    la, lb = q4 + 8, q4 + 9
    e(f"v_lshrrev_b32 {v(la)}, 8, {v(q4)}")
    e(f"v_lshrrev_b32 {v(lb)}, 8, {v(q4+1)}")
    e(f"v_lshrrev_b32 {v(d1)}, 1, {v(la)}")
    e(f"v_sub_u32 {v(d0)}, {v(la)}, {v(d1)}")
    e(f"v_cndmask_b32 {v(la)}, {v(la)}, {v(d0)}, vcc")
    e(f"v_cndmask_b32 {v(lb)}, {v(lb)}, {v(d1)}, vcc")
    e(f"v_max_u32 {v(ln)}, {v(la)}, {v(lb)}")
    e(f"v_min_u32 {v(k0)}, 63, {v(ln)}")
    e(f"v_sub_u32 {v(k0)}, 63, {v(k0)}")
    e(f"v_lshlrev_b32 {v(k0)}, 2, {v(k0)}")
    e(f"v_add_u32 {v(hv)}, {s(s_tb)}, {v(k0)}")
    e(f"ds_add_rtn_u32 {v(o0)}, {v(hv)}, {v(vOne)} offset:{T_H2}")
    e(f"ds_read_b32 {v(hv)}, {v(ad)} offset:{T_H2}")
    e(f"v_and_b32 {v(q4)}, 0xff, {v(q4)}")
    e(f"v_and_b32 {v(q4+1)}, 0xff, {v(q4+1)}")
    e("s_waitcnt lgkmcnt(0)")
    e(f"v_mov_b32 {v(hs)}, {v(hv)}")
    wave_incl_scan(e, hs)
    e(f"v_sub_u32 {v(hs)}, {v(hs)}, {v(hv)}")
    e(f"ds_bpermute_b32 {v(k0)}, {v(k0)}, {v(hs)}")
    e("s_waitcnt lgkmcnt(0)")
    e(f"v_add_u32 {v(k0)}, {v(k0)}, {v(o0)}")
    e(f"v_lshrrev_b32 {v(k1)}, 4, {v(k0)}")
    e(f"v_lshl_add_u32 {v(hv)}, {v(k1)}, 2, {s(s_tb)}")
    e(f"v_max_u32 {v(ln)}, 1, {v(ln)}")
    e(f"ds_max_u32 {v(hv)}, {v(ln)} offset:{T_TL}")
    e(f"v_mov_b32 {v(hs)}, {s(s_tb)}")
    e(f"ds_read_b128 {v(q4+4,4)}, {v(hs)} offset:{T_TL}")
    e(f"ds_read_b32 {v(ln)}, {v(hv)} offset:{T_TL}")
    e.c("slot table: byte offset of the output row, or the mark of a second half")
    e(f"s_mul_i32 {s(s_t0)}, {s(s_mybk)}, {NPB}")
    e(f"v_add_u32 {v(q4+2)}, {s(s_t0)}, {v(q4)}")
    e(f"v_add_u32 {v(q4+3)}, {s(s_t0)}, {v(q4+1)}")
    e(f"v_lshlrev_b32 {v(q4+2)}, 9, {v(q4+2)}")
    e(f"v_lshlrev_b32 {v(q4+3)}, 9, {v(q4+3)}")
    e(f"v_mov_b32 {v(d1)}, {hex(SPLITMARK)}")
    e(f"v_cndmask_b32 {v(q4+3)}, {v(q4+3)}, {v(d1)}, vcc")
    e(f"s_lshl_b32 {s(s_t0)}, {s(s_rp)}, 9")
    e(f"s_add_u32 {s(s_t0)}, {s(s_t0)}, {L_SLOTN}")
    e(f"v_lshl_add_u32 {v(hv)}, {v(k0)}, 3, {s(s_t0)}")
    e(f"ds_write_b64 {v(hv)}, {v(q4+2,2)}")
    e("s_waitcnt lgkmcnt(1)")
    e(f"v_mov_b32 {v(o1)}, 0")
    for t in range(3):
        e(f"v_cmp_lt_u32 {s(s_ex,2)}, {t}, {v(k1)}")
        e(f"v_add_u32 {v(d0)}, {v(o1)}, {v(q4+4+t)}")
        e("s_nop 0")
        e(f"v_cndmask_b32 {v(o1)}, {v(o1)}, {v(d0)}, {s(s_ex,2)}")
    e(f"v_and_b32 {v(k0)}, 15, {v(k0)}")
    e(f"v_lshlrev_b32 {v(k0)}, 1, {v(k0)}")
    e(f"v_lshl_add_u32 {v(k0)}, {v(o1)}, 5, {v(k0)}")
    e(f"v_lshl_or_b32 {v(d0)}, {v(sp)}, 20, {v(k0)}")
    e(f"v_add_u32 {v(d1)}, 1, {v(k0)}")
    e(f"v_lshl_add_u32 {v(q4)}, {v(q4)}, 2, {s(s_tb)}")
    e(f"v_lshl_add_u32 {v(q4+1)}, {v(q4+1)}, 2, {s(s_tb)}")
    e(f"ds_write_b32 {v(q4)}, {v(d0)} offset:{T_INFO}")
    e("s_not_b64 exec, vcc")
    e(f"ds_write_b32 {v(q4+1)}, {v(d1)} offset:{T_INFO}")
    e("s_mov_b64 exec, -1")
    e.c("rows [first empty, end) of both slots")
    e(f"v_add_lshl_u32 {v(ln)}, {v(ln)}, {v(o1)}, 16")
    e(f"v_add3_u32 {v(la)}, {v(la)}, {v(o1)}, {v(ln)}")
    e(f"v_add3_u32 {v(lb)}, {v(lb)}, {v(o1)}, {v(ln)}")
    e(f"ds_write_b64 {v(hv)}, {v(la,2)} offset:{L_SLEN - L_SLOTN}")
    e("s_branch LB_nosort")
    e("LB_idle:")
    e(f"s_cmp_eq_u32 {s(s_t0)}, 3")
    e("s_cbranch_scc1 LB_nopre")
    e.c("waves 1, 2, 5, 6: first rank of every source bin of a node")
    e(f"s_lshl_b32 {s(s_t0)}, {s(s_t0)}, 11")
    e(f"s_add_u32 {s(s_t0)}, {s(s_t0)}, {s(s_tb)}")
    e(f"s_sub_u32 {s(s_t0)}, {s(s_t0)}, 2048")
    e(f"v_lshl_add_u32 {v(hv)}, {v(vLane)}, 5, {s(s_t0)}")
    e(f"ds_read_b128 {v(R,4)}, {v(hv)} offset:{T_CNT}")
    e(f"ds_read_b128 {v(R+4,4)}, {v(hv)} offset:{T_CNT + 16}")
    e(f"v_mov_b32 {v(R+8)}, 0")
    e("s_waitcnt lgkmcnt(0)")
    for i in range(1, 8):
        e(f"v_add_u32 {v(R+8+i)}, {v(R+7+i)}, {v(R+i-1)}")
    e(f"ds_write_b128 {v(hv)}, {v(R+8,4)} offset:{T_PRE}")
    e(f"ds_write_b128 {v(hv)}, {v(R+12,4)} offset:{T_PRE + 16}")
    e("LB_nopre:")
    a_first()
    w_load()
    e("LB_nosort:")
    e("s_waitcnt lgkmcnt(0)")
    e("s_barrier")
    stamp(4)
    e(f"v_mov_b32 {v(q[0])}, 0")
    e(f"ds_read_b128 {v(q4,4)}, {v(q[0])} offset:{T_TL}")
    e(f"ds_read_b128 {v(q4+4,4)}, {v(q[0])} offset:{TB + T_TL}")
    for k in range(4):
        e(f"ds_read_b32 {v(q[3+k])}, {v(vRec+4*k+2)} offset:{T_INFO}")
        e(f"ds_read_b32 {v(vRec+4*k+3)}, {v(vRec+4*k+3)} offset:{T_PRE}")
    e("s_waitcnt lgkmcnt(8)")
    for k in range(8):
        e(f"v_readfirstlane_b32 {s(s_TL+k)}, {v(q4+k)}")
    e.c("s_TL holds running sums of the tile lengths; a job that does not fit is halved")
    e(f"s_mov_b32 {s(s_t1)}, 0")
    for h in range(2):
        for k in range(1, 4):
            e(f"s_add_u32 {s(s_TL+4*h+k)}, {s(s_TL+4*h+k)}, {s(s_TL+4*h+k-1)}")
    e(f"s_max_u32 {s(s_t0)}, {s(s_TL+3)}, {s(s_TL+7)}")
    e(f"s_cmp_gt_u32 {s(s_t0)}, {SC}")
    e("s_cbranch_scc1 LB_shrink")

    def scatter(h):
        e(f"s_mov_b32 {s(s_t0)}, {L_META0 + MS * h}")
        for k in range(4 * h, 4 * h + 4):
            inf, rk = q[3 + k], vRank + k
            e(f"v_add_u32 {v(rk)}, {v(rk)}, {v(vRec+4*k+3)}")
            e(f"v_lshrrev_b32 {v(q[0])}, 20, {v(inf)}")
            e(f"v_and_b32 {v(q[1])}, {v(q[0])}, {v(rk)}")
            e(f"v_lshrrev_b32 {v(rk)}, {v(q[0])}, {v(rk)}")
            e(f"v_lshl_add_u32 {v(rk)}, {v(rk)}, 5, {v(q[1])}")
            e(f"v_add_u32 {v(inf)}, {v(inf)}, {v(rk)}")
            e(f"v_and_b32 {v(inf)}, 0x7ff, {v(inf)}")
            e(f"v_lshl_add_u32 {v(rk)}, {v(inf)}, 3, {s(s_t0)}")
            if h:
                e(f"v_mov_b32 {v(PQ+k-4)}, -1")
            e(f"s_mov_b64 exec, {s(s_m+2*k,2)}")
            e(f"ds_write_b64 {v(rk)}, {v(vRec+4*k,2)}")
            if h:
                e(f"v_lshl_or_b32 {v(PQ+k-4)}, {v(inf)}, 20, {v(vPos+k)}")
            e("s_mov_b64 exec, -1")

    e("s_waitcnt lgkmcnt(0)")
    for k in range(4, 8):
        e(f"ds_read_b32 {v(q[3+k])}, {v(vRec+4*k+2)} offset:{T_INFO + TB}")
        e(f"ds_read_b32 {v(vRec+4*k+3)}, {v(vRec+4*k+3)} offset:{T_PRE + TB}")
    scatter(0)
    e(f"s_and_b32 {s(s_t0)}, {s(s_w)}, 3")
    e("s_cbranch_scc1 LB_aissued")
    a_first()
    w_load()
    e("LB_aissued:")

    def a_commit(qreg, masks, tmp):
        out = []
        for k in range(4):
            qr = qreg(k)
            out.append([f"v_lshlrev_b32 {v(tmp)}, 5, {v(qr)}",
                        f"v_lshlrev_b32 {v(qr)}, 1, {v(qr)}",
                        f"v_and_or_b32 {v(tmp)}, {v(qr)}, 16, {v(tmp)}",
                        f"v_xor_b32 {v(qr)}, 16, {v(tmp)}"])
            out.append([f"s_mov_b64 exec, {masks(k)}",
                        f"ds_write_b128 {v(tmp)}, {v(F+8*k,4)} offset:{L_A}",
                        f"ds_write_b128 {v(qr)}, {v(F+8*k+4,4)} offset:{L_A}",
                        "s_mov_b64 exec, -1"])
        return out

    def a_zero_prep(rho, ra):
        e(f"v_and_b32 {v(ra)}, 0x1fc, v0")
        e(f"v_add_u32 {v(ra)}, {L_SLEN + 512 * rho}, {v(ra)}")
        e(f"ds_read_b32 {v(ra)}, {v(ra)}")

    def a_zero(ra, rb, rc, z):
        lab = e.label("zero")
        for k in range(4):
            e(f"v_mov_b32 {v(z+k)}, 0")
        e(f"v_bfe_u32 {v(rb)}, v0, 1, 1")
        e(f"v_add_u32 {v(ra)}, {v(ra)}, {v(rb)}")
        e(f"v_lshrrev_b32 {v(rb)}, 16, {v(ra)}")
        e(f"v_and_b32 {v(ra)}, 0xffff, {v(ra)}")
        e(f"v_sub_u32 {v(rb)}, {v(rb)}, {v(ra)}")
        e(f"v_lshlrev_b32 {v(ra)}, 10, {v(ra)}")
        e(f"v_and_b32 {v(rc)}, 0x7c, v0")
        e(f"v_lshl_add_u32 {v(ra)}, {v(rc)}, 3, {v(ra)}")
        e(f"v_and_b32 {v(rc)}, 1, v0")
        e(f"v_lshl_add_u32 {v(ra)}, {v(rc)}, 4, {v(ra)}")
        e(f"{lab}:")
        for j in range(2):
            e(f"v_cmpx_lt_i32 vcc, {2 * j}, {v(rb)}")
            e(f"ds_write_b128 {v(ra)}, {v(z,4)} offset:{L_A + 2048 * j}")
        e(f"v_add_u32 {v(ra)}, 4096, {v(ra)}")
        e(f"v_subrev_u32 {v(rb)}, 4, {v(rb)}")
        e(f"s_cbranch_execnz {lab}")
        e("s_mov_b64 exec, -1")

    wraps = []

    def src_next(ph):
        a, b = e.label("wrap"), e.label("back")
        wraps.append((a, b))
        return [f"v_add_u32 {v(aS)}, {s(s_incB if ph == 2 else s_incA)}, {v(aS)}",
                f"s_sub_u32 {s(s_pcnt)}, {s(s_pcnt)}, 1", f"s_cbranch_scc1 {a}", f"{b}:"] + src_read()

    def src_read():
        return [f"ds_read_u16 {v(SRC0)}, {v(aS)} offset:6", f"ds_read_u16 {v(SRC1)}, {v(aS)} offset:14"]

    def dma(ph):
        return [f"s_add_u32 m0, {s(s_rbeg)}, {ph * 2048}",
                None,
                f"buffer_load_dwordx4 {v(SRC0,2)}, {s(S_X,4)}, {s(s_off+ph)} idxen offen lds",
                f"buffer_load_dwordx4 {v(SRC1,2)}, {s(S_X,4)}, {s(s_off+ph)} idxen offen offset:1024 lds"]

    def x_read(slot):
        return [f"ds_read_b128 {v(XR,4)}, {v(cX0)} offset:{slot * 2048}",
                f"ds_read_b128 {v(XR+4,4)}, {v(cX1)} offset:{slot * 2048}"]

    def pass_setup():
        e(f"v_add_u32 {v(aA)}, {s(s_abeg)}, {v(cA)}")
        e(f"v_add_u32 {v(aY)}, {s(s_mbeg)}, {v(cY)}")
        e(f"ds_read_b128 {v(AF,4)}, {v(aA)}")
        e(f"s_sub_u32 {s(s_cnt)}, {s(s_L)}, 1")

    def round_params(rho):
        c = s_TL + 4 * rho
        e(f"s_bitcmp1_b32 {s(s_tile)}, 0")
        e(f"s_cselect_b32 {s(s_t0)}, {s(c)}, 0")
        e(f"s_cselect_b32 {s(s_t1)}, {s(c+1)}, {s(c)}")
        e(f"s_cselect_b32 {s(s_t2)}, {s(c+2)}, {s(c+1)}")
        e(f"s_cselect_b32 {s(s_t3)}, {s(c+3)}, {s(c+2)}")
        e(f"s_bitcmp1_b32 {s(s_tile)}, 1")
        e(f"s_cselect_b32 {s(s_t0)}, {s(s_t2)}, {s(s_t0)}")
        e(f"s_cselect_b32 {s(s_t1)}, {s(s_t3)}, {s(s_t1)}")
        e(f"s_sub_u32 {s(s_L)}, {s(s_t1)}, {s(s_t0)}")
        e(f"s_lshl_b32 {s(s_abeg)}, {s(s_t0)}, 10")
        e(f"s_add_u32 {s(s_abeg)}, {s(s_abeg)}, {L_A}")
        e(f"s_lshl_b32 {s(s_mbeg)}, {s(s_t0)}, 8")
        e(f"s_add_u32 {s(s_mbeg)}, {s(s_mbeg)}, {L_META0 + MS * rho}")
        e(f"s_mul_i32 {s(s_pcnt)}, {s(s_L)}, 3")
        e(f"s_sub_u32 {s(s_pcnt)}, {s(s_pcnt)}, 1")
        e(f"s_mov_b32 {s(s_incA)}, 0")
        e(f"s_movk_i32 {s(s_incB)}, 256")
        e(f"s_lshl_b32 {s(s_t0)}, {s(s_chi)}, 6")
        for ph in range(3):
            e(f"s_add_u32 {s(s_off+ph)}, {s(s_t0)}, {128 * (ph + 1)}")
        e(f"v_add_u32 {v(aS)}, {s(s_mbeg)}, {v(cS)}")

    def prime(lo=0, hi=3):
        if lo == 0:
            e.c("prime the x ring with three gathers")
            emit(src_read())
        for g in range(lo, hi):
            e("s_waitcnt lgkmcnt(0)")
            emit(dma(g) + src_next(g))

    round_params(0)
    e(f"s_mov_b32 {s(s_rho)}, 0")
    a_zero_prep(0, q[2])
    e("s_waitcnt lgkmcnt(0)")
    e("s_barrier")
    stamp(5)
    ps = opt.prime_split
    prime(0, ps)
    stamp(6)
    a_zero(q[2], q[1], q[0], q4)
    if ps == 3:
        scatter(1)
    xstamp(24)
    e(f"s_waitcnt vmcnt({2 * ps})")
    xstamp(25)
    for g_ in a_commit(lambda k: q[3 + k], lambda k: s(s_m + 2 * k, 2), q[0]):
        emit(g_)
    xstamp(26)
    if ps < 3:
        prime(ps, 3)
        xstamp(27)
        e("s_barrier")
        xstamp(28)
        scatter(1)
        e("s_waitcnt vmcnt(4)")
    else:
        e("s_waitcnt vmcnt(4) lgkmcnt(0)")
        e("s_barrier")

    e("LB_round:")
    stamp(7)
    if opt.prof:
        e(f"v_writelane_b32 v254, {s(s_L)}, 29")
    emit(x_read(0))
    pass_setup()

    def regs(x):
        return [pair(x, i) for i in range(8)] if isinstance(x, str) else [x + 2 * i for i in range(8)]

    def pk_fma(d, a, b):
        return [f"v_pk_fma_f32 {v(p,2)}, {v(x,2)}, {v(y,2)}, {v(p,2)}" for p, x, y in zip(regs(d), regs(a), regs(b))]

    def pk_mul(d, a, b):
        return [f"v_pk_mul_f32 {v(p,2)}, {v(x,2)}, {v(y,2)}" for p, x, y in zip(regs(d), regs(a), regs(b))]

    def pk_fmay(d, a, j, neg=False):
        m = " op_sel_hi:[1,0,1]" + (" neg_lo:[0,1,0] neg_hi:[0,1,0]" if neg else "")
        return [f"v_pk_fma_f32 {v(p,2)}, {v(x,2)}, {v(YF+2*(j-1),2)}, {v(p,2)}{m}" for p, x in zip(regs(d), regs(a))]

    def pk_muly(d, a, j, neg=False):
        m = " op_sel_hi:[1,0]" + (" neg_lo:[0,1] neg_hi:[0,1]" if neg else "")
        return [f"v_pk_mul_f32 {v(p,2)}, {v(x,2)}, {v(YF+2*(j-1),2)}{m}" for p, x in zip(regs(d), regs(a))]

    ont = ["", " nt", " sc1", " sc0 sc1", " sc0", " sc1 nt", " sc0 sc1 nt"][opt.b_nt_out]
    OUTR = [blk["C1"][0], blk["C2"][0], blk["C1"][0], blk["C2"][0]]

    def out_store(b):
        for r in range(4):
            e(f"buffer_store_dwordx2 {v(OUTR[b]+2*r,2)}, {v(PQ+r)}, {s(S_OUT,4)}, 0 offen offset:{128 * b}{ont}")

    def weights_dma():
        e.c("output weights into this wave's ring space once its own gathers have drained")
        e(f"s_mul_i32 {s(s_t0)}, {s(s_w)}, 5120")
        e(f"s_add_u32 {s(s_t0)}, {s(s_t0)}, {WSI_OFF}")
        e(f"v_lshl_add_u32 {v(t0)}, {v(vLane)}, 4, {s(s_t0)}")
        e(f"s_mov_b32 m0, {s(s_rbeg)}")
        e("s_waitcnt vmcnt(0) lgkmcnt(0)")
        for i in range(4):
            e(f"buffer_load_dwordx4 {v(t0)}, {s(S_WS,4)}, 0 offen offset:{1024 * i} lds")
        e(f"s_add_u32 m0, {s(s_rbeg)}, 4096")
        e(f"v_add_u32 {v(t0)}, 4096, {v(t0)}")
        e(f"buffer_load_dwordx4 {v(t0)}, {s(S_WS,4)}, 0 offen lds")

    R0, R1, R2 = R, R + 16, R + 32
    slows = []

    def mfma(dst, path):
        return f"v_mfma_f32_32x32x16_bf16 {v(dst,16)}, {v(W+4*path,4)}, {v(AF,4)}, 0"

    def sub_step(ph, mf, y_off, a_off, body, ny, tail):
        e("s_waitcnt lgkmcnt(0)")
        for i in range(8):
            if i % 3 == 0 and i // 3 < len(mf):
                e(mf[i // 3])
            e(f"v_lshlrev_b32 {v(FX+2*i)}, 16, {v(XR+i)}")
            e(f"v_and_b32 {v(FX+2*i+1)}, {s(s_msk)}, {v(XR+i)}")
        d = dma(ph)
        e(d[0])
        later = 2
        if y_off is not None:
            for j in range(3):
                e(f"ds_read_u16_d16_hi {v(YF+2*j)}, {v(aY)} offset:{y_off + 2 * j}")
        if a_off is not None:
            e(f"ds_read_b128 {v(AF,4)}, {v(aA)} offset:{a_off}")
            later += 1
        if y_off is None and a_off is None:
            e("s_nop 0")
        emit(([] if opt.dbg & 1 else d[2:]) + src_next(ph))
        if opt.dbg & 2:
            body = body[:ny] + body[-opt.x_tail:]
        emit(body[:ny])
        if y_off is not None:
            e(f"s_waitcnt lgkmcnt({later})")
        cut = len(body) - opt.x_tail
        emit(body[ny:cut])
        if opt.slow:
            a, b = e.label("slow"), e.label("fast")
            slows.append((a, b))
            e(f"s_cbranch_vccnz {a}")
            e(f"{b}:")
        e("s_waitcnt vmcnt(4)")
        emit(x_read((ph + 1) % 3))
        emit(tail)
        emit(body[cut:])

    def zero(names):
        for b in names:
            for p_ in regs(b):
                e(f"v_mov_b64 {v(p_,2)}, 0")

    def finish(names):
        e.c("finished blocks: round to bf16, then gather this wave's rows in the low four registers")
        for b in names:
            for i, p_ in enumerate(regs(b)):
                e(f"v_cvt_pk_bf16_f32 {v(blk[b][0]+i)}, {v(p_)}, {v(p_+1)}")
        e("s_nop 1")
        for b in names:
            for i in range(4):
                e(f"v_permlane16_swap_b32 {v(blk[b][0]+i)}, {v(blk[b][0]+4+i)}")

    VB = ["S1", "S2", "S3", "D", "C1", "C2", "C3"]
    SB = ["P0", "Q1", "Q2", "Q3"]
    e.c("vector pass: three gathered components share one set of radial products")
    stamp(10)
    if opt.slow:
        e(f"s_cmp_ge_u32 {s(s_tile)}, {opt.slow}")
        e("s_cselect_b64 vcc, -1, 0")
    if opt.nobar == 1:
        e("s_setprio 1")
    if opt.nobar == 3:
        e.c("the wave that is further behind in its sweep issues first")
        e("s_setprio 3")
        e(f"s_mul_i32 {s(s_th)}, {s(s_L)}, 171")
        e(f"s_lshr_b32 {s(s_th+1)}, {s(s_th)}, 9")
        e(f"s_lshr_b32 {s(s_th)}, {s(s_th)}, 8")
    late = opt.r1_late
    prios = []

    def v_step(first):
        fresh = set(VB) if first else set()

        def acc(d, a, b):
            if d in fresh:
                fresh.discard(d)
                return pk_mul(d, a, b)
            return pk_fma(d, a, b)

        def accy(d, a, j, neg=False):
            if d in fresh:
                fresh.discard(d)
                return pk_muly(d, a, j, neg)
            return pk_fmay(d, a, j, neg)

        for ph in range(3):
            m = ph + 1
            nx, pv = m % 3 + 1, (m + 1) % 3 + 1
            body = (acc(f"S{m}", FX, R0) + (pk_muly(DD, FX, m) if ph == 0 else pk_fmay(DD, FX, m)) + pk_mul(FX, FX, R2)
                    + accy(f"C{nx}", FX, pv) + accy(f"C{pv}", FX, nx, True))
            if ph == 2:
                body += acc("D", DD, R1)
            mf = [mfma(R0, 3), mfma(R2, 4)] if ph == 0 else []
            if ph == late:
                mf.append(mfma(R1, 1))
            tail = [f"v_add_u32 {v(aA)}, 1024, {v(aA)}", f"v_add_u32 {v(aY)}, 256, {v(aY)}"] if ph == 2 else []
            if ph == 2 and opt.nobar == 3 and not first:
                for i in range(2):
                    a_, b_ = e.label("prio"), e.label("pback")
                    prios.append((a_, b_, 2 - i))
                    tail += [f"s_cmp_eq_u32 {s(s_cnt)}, {s(s_th+i)}", f"s_cbranch_scc1 {a_}", f"{b_}:"]
            sub_step(ph, mf, 0 if ph == 0 else None, 1024 if ph == late else None, body, 8, tail)
        e(f"s_sub_u32 {s(s_cnt)}, {s(s_cnt)}, 1")

    if opt.peel:
        v_step(True)
        e("s_cbranch_scc1 LB_vec_end")
    else:
        zero(VB)
    e("LB_vec:")
    v_step(False)
    e("s_cbranch_scc0 LB_vec")
    e("LB_vec_end:")
    pass_setup()
    finish(VB)
    stamp(15)
    if not opt.nobar:
        e("s_barrier")
    if opt.nobar in (1, 3):
        e("s_setprio 0")
    e.c("scalar pass")
    stamp(8)

    def s_step(ph, first):
        f1, f2 = (pk_mul, pk_muly) if first else (pk_fma, pk_fmay)
        body = f1("P0", FX, R0) + pk_mul(FX, FX, R1) + f2("Q1", FX, 1) + f2("Q2", FX, 2) + f2("Q3", FX, 3)
        tail = [f"v_add_u32 {v(aA)}, 3072, {v(aA)}", f"v_add_u32 {v(aY)}, 768, {v(aY)}"] if ph == 2 else []
        sub_step(ph, [mfma(R0, 0), mfma(R1, 2)], 256 * ph, 1024 * (ph + 1), body, 16, tail)
        e(f"s_sub_u32 {s(s_cnt)}, {s(s_cnt)}, 1")

    if opt.peel:
        s_step(0, True)
        e("s_cbranch_scc0 LB_scal1")
        e("s_branch LB_scal_end")
    else:
        zero(SB)
    e("LB_scal:")
    for ph in range(3):
        if ph == 1:
            e("LB_scal1:")
        s_step(ph, False)
        e("s_cbranch_scc1 LB_scal_end" if ph < 2 else "s_cbranch_scc0 LB_scal")
    e("LB_scal_end:")
    weights_dma()
    finish(SB)
    stamp(9)

    e("LB_epi:")
    order = ["P0", "D", "Q1", "Q2", "Q3", "S1", "S2", "S3", "C1", "C2", "C3"]
    WB = [XR, XR + 4, AF, WX, DD + 8, DD + 12]
    aW0, aW1, aSw, aSx = aA, aY, t0, t1

    def K(b, nu, r=0):
        return R + 16 * b + 4 * nu + r

    e(f"s_mul_i32 {s(s_t0)}, {s(s_chi)}, {4 * RING_W}")
    e(f"v_lshl_add_u32 {v(aW0)}, {v(vLane)}, 4, {s(s_t0)}")
    e(f"s_sub_u32 {s(s_t0)}, {4 * RING_W}, {s(s_t0)}")
    e(f"v_lshl_add_u32 {v(aW1)}, {v(vLane)}, 4, {s(s_t0)}")
    e(f"s_mul_i32 {s(s_t0)}, {s(s_w)}, 10240")
    e(f"s_add_u32 {s(s_t0)}, {s(s_t0)}, {L_A}")
    e(f"v_lshl_add_u32 {v(aSw)}, {v(vLane)}, 4, {s(s_t0)}")
    e(f"s_lshl_b32 {s(s_t0)}, {s(s_w)}, 10")
    e(f"s_add_u32 {s(s_t0)}, {s(s_t0)}, {L_XTRA}")
    e(f"v_lshl_add_u32 {v(aSx)}, {v(vLane)}, 4, {s(s_t0)}")
    e.c("output mode of this round: bit 0 first job, bit 1 last job, bit 2 idle")
    e(f"s_cmp_eq_u32 {s(s_rho)}, 0")
    e(f"s_cselect_b32 {s(s_t0)}, {s(s_act)}, {s(s_act+1)}")
    e(f"s_cselect_b32 {s(s_mode)}, {s(s_first)}, {s(s_first+1)}")
    e(f"s_cselect_b32 {s(s_t1)}, {s(s_r0)}, {s(s_r0+1)}")
    e(f"s_cselect_b32 {s(s_t2)}, {s(s_J)}, {s(s_J+1)}")
    e(f"s_cselect_b32 {s(s_t3)}, {s(s_tot)}, {s(s_tot+1)}")
    e(f"s_and_b32 {s(s_mode)}, {s(s_mode)}, 1")
    e(f"s_andn2_b32 {s(s_t0)}, 4, {s(s_t0)}")
    e(f"s_or_b32 {s(s_mode)}, {s(s_mode)}, {s(s_t0)}")
    e(f"s_add_u32 {s(s_t1)}, {s(s_t1)}, {s(s_t2)}")
    e(f"s_cmp_eq_u32 {s(s_t1)}, {s(s_t3)}")
    e(f"s_cselect_b32 {s(s_t0)}, 2, 0")
    e(f"s_or_b32 {s(s_mode)}, {s(s_mode)}, {s(s_t0)}")
    e(f"s_cmp_lg_u32 {s(s_rho)}, 0")
    e("s_cbranch_scc1 LB_noa")
    e.c("attribute rows of the second bucket, in record order")
    for k in range(4):
        e(f"v_cmp_le_i32 {s(s_m+8+2*k,2)}, 0, {v(PQ+k)}")
        e(f"v_and_b32 {v(t2)}, 0xfffff, {v(PQ+k)}")
        e(f"v_lshlrev_b32 {v(t2)}, 5, {v(t2)}")
        e(f"v_lshrrev_b32 {v(PQ+k)}, 20, {v(PQ+k)}")
        if k == 3:
            e(f"s_cmp_eq_u64 {s(s_m+14,2)}, 0")
            e("s_cbranch_scc1 LB_a3")
        e(f"buffer_load_dwordx4 {v(F+8*k,4)}, {v(t2)}, {s(S_A,4)}, 0 offen{ant}")
        e(f"buffer_load_dwordx4 {v(F+8*k+4,4)}, {v(t2)}, {s(S_A,4)}, 0 offen offset:16{ant}")
    e("LB_a3:")
    round_params(1)
    e("s_waitcnt vmcnt(6)")
    e("s_branch LB_b1")
    e("LB_noa:")
    e("s_waitcnt vmcnt(0)")
    e("LB_b1:")
    e("s_barrier")
    stamp(16)
    ds = DsTrack(e)

    seq = (list(range(8, 20)) + list(range(8)) if opt.ord3 else list(range(20))) + list(range(20))

    def wread(n):
        if n < 40:
            f = seq[n]
            ds.op(f"ds_read_b128 {v(WB[n % 6],4)}, {v(aW0 if n < 20 else aW1)} offset:{(f // 5) * RING_W + (f % 5) * 1024}", ("w", n))

    def swap_io(i, write):
        reg = v(blk[order[i]][0] + 4, 4)
        ad_, off = (aSw, 1024 * i) if i < 10 else (aSx, 0)
        if write:
            ds.op(f"ds_write_b128 {v(ad_)}, {reg} offset:{off}", ("sw", i))
        else:
            ds.op(f"ds_read_b128 {reg}, {v(ad_)} offset:{off}", ("sr", order[i]))

    def frag(n):
        ph, f = n // 20, seq[n]
        mu, nu = f >> 2, f & 3
        users = [(0, order[mu])] if mu < 2 else [(j, order[3 * mu - 5 + j]) for j in (1, 2, 3)]
        ds.need(("w", n), *([("sr", nm) for _, nm in users] if ph else []))
        for b, nm in users:
            c = "0" if ph == 0 and mu in (0, 2) else v(K(b, nu), 4)
            e(f"v_mfma_f32_16x16x32_bf16 {v(K(b,nu),4)}, {v(blk[nm][0]+4*ph,4)}, {v(WB[n % 6],4)}, {c}")
        wread(n + 6)

    for n in range(6):
        wread(n)
    nb = opt.b2_at
    for n in range(nb):
        frag(n)
        if n < 11:
            swap_io(n, True)
    e(f"s_lshl_b32 {s(s_t0)}, {s(s_chi)}, 1")
    e(f"s_sub_u32 {s(s_t0)}, 1, {s(s_t0)}")
    e(f"s_mul_i32 {s(s_t1)}, {s(s_t0)}, 10240")
    e(f"s_lshl_b32 {s(s_t0)}, {s(s_t0)}, 10")
    e(f"v_add_u32 {v(aSw)}, {s(s_t1)}, {v(aSw)}")
    e(f"v_add_u32 {v(aSx)}, {s(s_t0)}, {v(aSx)}")
    ds.need(("sw", 10))
    e("s_barrier")
    stamp(17)
    pend = list(range(11))
    for i in range(6):
        swap_io(pend.pop(0), False)
    for n in range(nb, 20):
        frag(n)
        if pend:
            swap_io(pend.pop(0), False)
    while pend:
        swap_io(pend.pop(0), False)
    NODE = blk["P0"][0]
    e(f"s_lshl_b32 {s(s_t0)}, {s(s_rho)}, 9")
    e(f"s_lshl_b32 {s(s_t1)}, {s(s_tile)}, 7")
    e(f"s_add_u32 {s(s_t0)}, {s(s_t0)}, {s(s_t1)}")
    e(f"s_lshl_b32 {s(s_t1)}, {s(s_chi)}, 6")
    e(f"s_add_u32 {s(s_t0)}, {s(s_t0)}, {s(s_t1)}")
    e(f"s_add_u32 {s(s_t0)}, {s(s_t0)}, {L_SLOTN}")
    e(f"v_and_b32 {v(t0)}, 0x30, {v(vLane)}")
    e(f"v_add_u32 {v(t0)}, {s(s_t0)}, {v(t0)}")
    ds.op(f"ds_read_b128 {v(NODE,4)}, {v(t0)}", "node")
    ZR = blk["D"][0]
    e(f"v_and_b32 {v(ZR)}, 0x1fc, v0")
    e(f"v_add_u32 {v(ZR)}, {L_SLEN + 512}, {v(ZR)}")
    ds.op(f"ds_read_b32 {v(ZR)}, {v(ZR)}", "slen")
    for n in range(20, 28):
        frag(n)
    ds.need(("sr", "C3"), "node", "slen")
    e(f"v_mov_b32 {v(t0)}, {hex(SPLITMARK)}")
    for k in range(2):
        e(f"v_cmp_eq_u32 {s(s_m+2*k,2)}, {v(NODE+2*k+1)}, {v(t0)}")
    e(f"v_and_b32 {v(t0)}, 15, {v(vLane)}")
    e(f"v_lshlrev_b32 {v(t0)}, 3, {v(t0)}")
    for n in range(28, 40):
        frag(n)
    stamp(18)
    e(f"s_cmp_lg_u32 {s(s_rho)}, 0")
    e("s_cbranch_scc1 LB_post")
    e.c("first bucket: every wave is done with the exchange area and the weights; set up the second bucket")
    e("s_barrier")
    stamp(23)
    prime(0, opt.mid_split)
    stamp(24)
    e(f"s_waitcnt vmcnt({2 * opt.mid_split})")
    for i, g_ in enumerate(a_commit(lambda k: PQ + k, lambda k: s(s_m + 8 + 2 * k, 2), t2)):
        if i == 6:
            e(f"s_cmp_eq_u64 {s(s_m+14,2)}, 0")
            e("s_cbranch_scc1 LB_c3")
        emit(g_)
    e("LB_c3:")
    a_zero(ZR, ZR + 1, ZR + 2, blk["Q1"][0])
    if opt.mid_split < 3:
        prime(opt.mid_split, 3)
    stamp(20)
    if opt.b5_early:
        e("s_waitcnt lgkmcnt(0)")
        e("s_barrier")
    e("LB_post:")
    e("s_nop 7")
    e.c("fold the second half of a split node into the first")
    e(f"s_or_b64 {s(s_ex,2)}, {s(s_m,2)}, {s(s_m+2,2)}")
    e("s_cbranch_scc0 LB_nofold")
    for k in range(2):
        e(f"s_mov_b64 exec, {s(s_m+2*k,2)}")
        for b in range(4):
            for nu in range(4):
                e(f"v_add_f32 {v(K(b,nu,2*k))}, {v(K(b,nu,2*k))}, {v(K(b,nu,2*k+1))}")
    e("s_mov_b64 exec, -1")
    e("LB_nofold:")
    e(f"s_cmp_lg_u32 {s(s_mode)}, 3")
    e("s_cbranch_scc1 LB_multi")
    e("LB_gate:")
    G = blk["S1"][0]
    O = blk["C3"][0]
    for r in range(4):
        e(f"v_add_u32 {v(PQ+r)}, {v(NODE+r)}, {v(t0)}")
    e(f"s_mov_b32 {s(s_t0)}, 0xbfb8aa3b")
    for i in range(16):
        e(f"v_mul_f32 {v(G+i)}, {s(s_t0)}, {v(K(0,0)+i)}")

    def out_pack(b):
        o = OUTR[b]
        for r in range(4):
            e(f"v_cvt_pk_bf16_f32 {v(o+2*r)}, {v(K(b,0,r))}, {v(K(b,1,r))}")
            e(f"v_cvt_pk_bf16_f32 {v(o+2*r+1)}, {v(K(b,2,r))}, {v(K(b,3,r))}")

    stamp(25)
    out_pack(0)
    out_store(0)
    stamp(26)
    for i in range(16):
        e(f"v_exp_f32 {v(G+i)}, {v(G+i)}")
    for i in range(16):
        e(f"v_add_f32 {v(G+i)}, 1.0, {v(G+i)}")
    for i in range(16):
        e(f"v_rcp_f32 {v(G+i)}, {v(G+i)}")
    stamp(27)
    for b in (1, 2, 3):
        for i in range(8):
            d = K(b, 0) + 2 * i
            e(f"v_pk_mul_f32 {v(d,2)}, {v(d,2)}, {v(G+2*i,2)}")
        out_pack(b)
        out_store(b)
    e("LB_round_end:")
    stamp(19)
    stamp_flush()
    e(f"s_cmp_lg_u32 {s(s_rho)}, 0")
    e("s_cbranch_scc1 LB_jobdone")
    e(f"s_mov_b32 {s(s_rho)}, 1")
    if opt.b5_early:
        e("s_waitcnt vmcnt(20)")
    else:
        e("s_waitcnt vmcnt(20) lgkmcnt(0)")
        e("s_barrier")
    e("s_branch LB_round")

    e("LB_jobdone:")
    for h in range(2):
        e(f"s_add_u32 {s(s_r0+h)}, {s(s_r0+h)}, {s(s_J+h)}")
        e(f"s_cmp_lg_u32 {s(s_r0+h)}, {s(s_tot+h)}")
        e(f"s_cselect_b32 {s(s_act+h)}, -1, 0")
    e(f"s_mov_b64 {s(s_first,2)}, 0")
    e(f"s_or_b32 {s(s_t0)}, {s(s_act)}, {s(s_act+1)}")
    e("s_cbranch_scc0 LB_end")
    e("s_branch LB_again")
    e("LB_shrink:")
    for h in range(2):
        e(f"s_add_u32 {s(s_t0)}, {s(s_J+h)}, 1")
        e(f"s_lshr_b32 {s(s_t0)}, {s(s_t0)}, 1")
        e(f"s_cmp_gt_u32 {s(s_TL+4*h+3)}, {SC}")
        e(f"s_cselect_b32 {s(s_cap+h)}, {s(s_t0)}, {s(s_cap+h)}")
    e("LB_again:")
    e("s_waitcnt vmcnt(0) lgkmcnt(0)")
    e("s_barrier")
    e("s_branch LB_job")

    e("LB_multi:")
    e.c("bucket processed in several jobs: carry the ungated sums through the workspace")
    PO = O
    e("s_waitcnt vmcnt(0)")
    e(f"s_bitcmp1_b32 {s(s_mode)}, 2")
    e("s_cbranch_scc1 LB_round_end")
    e(f"v_mov_b32 {v(t1)}, {hex(X_BYTES)}")
    e(f"v_lshrrev_b32 {v(t2)}, 1, {v(t0)}")
    for r in range(4):
        e(f"v_min_u32 {v(PO+r)}, {v(NODE+r)}, {v(t1)}")
        e(f"v_lshl_add_u32 {v(PO+r)}, {v(PO+r)}, 1, {v(t2)}")
    e(f"s_bitcmp1_b32 {s(s_mode)}, 0")
    e("s_cbranch_scc1 LB_multi_st")
    for b in range(4):
        for nu in range(4):
            for r in range(4):
                e(f"buffer_load_dword {v(G+4*nu+r)}, {v(PO+r)}, {s(S_PART,4)}, 0 offen offset:{(b*4+nu)*64} sc1")
        e("s_waitcnt vmcnt(0)")
        for i in range(16):
            e(f"v_add_f32 {v(K(b,0)+i)}, {v(K(b,0)+i)}, {v(G+i)}")
    e(f"s_bitcmp1_b32 {s(s_mode)}, 1")
    e("s_cbranch_scc1 LB_gate")
    e("LB_multi_st:")
    for b in range(4):
        for nu in range(4):
            for r in range(4):
                e(f"buffer_store_dword {v(K(b,nu,r))}, {v(PO+r)}, {s(S_PART,4)}, 0 offen offset:{(b*4+nu)*64}")
        e("s_waitcnt vmcnt(0)")
    e("s_branch LB_round_end")

    for a, b in wraps:
        e(f"{a}:")
        e.c("first event: switch the prefetch to the scalar component; second event: park it on the empty row")
        e(f"s_lshl_b32 {s(s_off)}, {s(s_chi)}, 6")
        e(f"s_mov_b32 {s(s_off+1)}, {s(s_off)}")
        e(f"s_mov_b32 {s(s_off+2)}, {s(s_off)}")
        e(f"s_sub_u32 {s(s_pcnt)}, {s(s_L)}, 1")
        e(f"s_xor_b32 {s(s_incA)}, {s(s_incA)}, 256")
        e(f"s_cselect_b32 {s(s_t3)}, {s(s_mbeg)}, {L_INV}")
        e(f"s_cselect_b32 {s(s_pcnt)}, {s(s_pcnt)}, -1")
        e(f"s_mov_b32 {s(s_incB)}, {s(s_incA)}")
        e(f"v_add_u32 {v(aS)}, {s(s_t3)}, {v(cS)}")
        e(f"s_branch {b}")
    for a, b, pr in prios:
        e(f"{a}:")
        e(f"s_setprio {pr}")
        e(f"s_branch {b}")
    for a, b in slows:
        e(f"{a}:")
        e("s_waitcnt vmcnt(2)")
        e(f"s_branch {b}")
    e("LB_end:")
    e("s_endpgm")
    return dict(vgpr=256 if opt.prof else va.p, sgpr=102 if opt.prof else sa.p)
```
